```python
import torch

def _softmax(x, axis=-1):
    return torch.softmax(x, dim=axis)
def _gelu(x):
    return torch.nn.functional.gelu(x, approximate="tanh")
def _silu(x):
    return torch.nn.functional.silu(x)
def _sigmoid(x):
    return torch.sigmoid(x)
def _layernorm(x, axis=-1, eps=1e-5):
    m = x.mean(dim=axis, keepdim=True)
    v = x.var(dim=axis, keepdim=True, unbiased=False)
    return (x - m) / torch.sqrt(v + eps)
def _scatter_add(tgt, idx, src, axis=0):
    return tgt.clone().index_add_(axis, idx, src)
def _segment_sum(src, seg, n):
    out = torch.zeros((n,) + src.shape[1:], dtype=src.dtype)
    return out.index_add_(0, seg, src)
def _pad(x, pw):
    flat = tuple(v for pair in reversed(pw) for v in pair)
    return torch.nn.functional.pad(x, flat)

kernel_name = 'gated_mix__softmax_full_mha__mha_block__prompt'

def setup_inputs():

    _w = (lambda a: (lambda t: t.to(torch.bfloat16) if t.is_floating_point() else t)(torch.as_tensor(a)))
    def _A_setup():
        B, S, D = 1, 2048, 448
        return {
            "x": _w((lambda *s: torch.randn(*s, dtype=torch.bfloat16) * 0.05)(B, S, D)),
            "wqkv": _w((lambda *s: torch.randn(*s, dtype=torch.bfloat16) * 0.8)(D, 3 * D)),
            "wo": _w((lambda *s: torch.randn(*s, dtype=torch.bfloat16) * 0.05)(D, D)),
        }
    _A_in = _A_setup()

    def _B_setup():
        B, S, D, H = 1, 2048, 448, 16
        return {
            "x": _w((lambda *s: torch.randn(*s, dtype=torch.bfloat16) * 0.05)(B, S, D)),
            "wqkv": _w((lambda *s: torch.randn(*s, dtype=torch.bfloat16) * 0.8)(D, 3 * D)),
            "wo": _w((lambda *s: torch.randn(*s, dtype=torch.bfloat16) * 0.05)(D, D)),
        }
    _B_in = _B_setup()

    return {
        "A_x": _A_in["x"],
        "A_wqkv": _A_in["wqkv"],
        "A_wo": _A_in["wo"],
        "B_x": _B_in["x"],
        "B_wqkv": _B_in["wqkv"],
        "B_wo": _B_in["wo"],
        "gate_w": _w((lambda *s: torch.randn(*s, dtype=torch.bfloat16) * 0.05)(448) * 16.0),
    }

def reference(A_x, A_wqkv, A_wo, B_x, B_wqkv, B_wo, gate_w):
    def _A_ref(x, wqkv, wo):
        B, S, D = x.shape
        H = 16; Dh = D // H
        qkv = (lambda x, *d: x.permute(*d))((x @ wqkv).reshape(B, S, 3, H, Dh), 2, 0, 3, 1, 4)
        q, k, v = qkv[0], qkv[1], qkv[2]
        scale = Dh ** -0.5
        scores = torch.einsum("bhqd,bhkd->bhqk", q, k) * scale
        p = _softmax(scores, axis=-1)
        o = torch.einsum("bhqk,bhkd->bhqd", p, v)
        return (lambda x, *d: x.permute(*d))(o, 0, 2, 1, 3).reshape(B, S, D) @ wo

    def _B_ref(x, wqkv, wo):
        B, S, D = x.shape
        H = 16
        Dh = D // H
        qkv = (lambda x, *d: x.permute(*d))((x @ wqkv).reshape(B, S, 3, H, Dh), 2, 0, 3, 1, 4)
        q, k, v = qkv[0], qkv[1], qkv[2]
        scores = torch.einsum("bhqd,bhkd->bhqk", q, k) * (Dh ** -0.5)
        p = _softmax(scores, axis=-1)
        o = torch.einsum("bhqk,bhkd->bhqd", p, v)
        return (lambda x, *d: x.permute(*d))(o, 0, 2, 1, 3).reshape(B, S, D) @ wo

    x = A_x
    g = _sigmoid((x * gate_w).sum(-1, keepdims=True))
    a = _A_ref(x, A_wqkv, A_wo)
    b = _B_ref(x, B_wqkv, B_wo)
    return g * a + (1 - g) * b
```

```python
import sys, struct, math

NAME = "gated_mix__softmax_full_mha__mha_block__prompt"
QF = 0
KVF = 4 << 20
GOFF = 12 << 20
OF = 13 << 20
WS_BYTES = 17 << 20


def f32(x):
    return "0x%08x" % struct.unpack("<I", struct.pack("<f", x))[0]


class A:
    def __init__(self):
        self.L = []

    def __call__(self, s=""):
        for line in s.split("\n"):
            line = line.rstrip()
            if not line.strip():
                continue
            t = line.strip()
            if t.endswith(":") or t.startswith("."):
                self.L.append(t)
            else:
                self.L.append("    " + t)

    def text(self):
        return "\n".join(self.L) + "\n"


def vr(a, n):
    return f"v[{a}:{a+n-1}]"


def srd(a, d, base, nrec):
    a(f"s_mov_b32 s{d}, s{base}")
    a(f"s_mov_b32 s{d+1}, s{base+1}")
    a(f"s_mov_b32 s{d+2}, {nrec}")
    a(f"s_mov_b32 s{d+3}, 0x00020000")


def header(a, k):
    a(f".globl {k}")
    a(".p2align 8")
    a(f".type {k},@function")
    a(f"{k}:")


def desc(k, nv):
    acc = (nv + 3) // 4 * 4
    return f""".amdhsa_kernel {k}
  .amdhsa_next_free_vgpr {nv}
  .amdhsa_next_free_sgpr 102
  .amdhsa_accum_offset {acc}
  .amdhsa_group_segment_fixed_size 0
  .amdhsa_kernarg_size 80
  .amdhsa_user_sgpr_count 2
  .amdhsa_user_sgpr_kernarg_segment_ptr 1
  .amdhsa_system_sgpr_workgroup_id_x 1
.end_amdhsa_kernel
"""


def mfma(d, x, y, c=None):
    cs = "0" if c is None else vr(c, 16)
    return f"v_mfma_f32_32x32x16_bf16 {vr(d,16)}, {vr(x,4)}, {vr(y,4)}, {cs}"


def k1(a, opt):
    k = "qkv_kernel"
    header(a, k)
    SLOT = 40960
    ST = opt.get("k1_store", "")
    a(f"""
    s_cmp_ge_u32 s2, 256
    s_cbranch_scc1 K1_end
    s_load_dwordx4 s[4:7], s[0:1], 0          ; x, A_wqkv
    s_load_dwordx2 s[8:9], s[0:1], 32         ; B_wqkv
    s_load_dwordx2 s[10:11], s[0:1], 48       ; gate_w
    s_load_dwordx2 s[12:13], s[0:1], 72       ; ws
    v_lshrrev_b32 v1, 6, v0
    v_and_b32 v2, 63, v0                      ; lane
    s_and_b32 s28, s2, 7
    s_lshr_b32 s29, s2, 3
    v_readfirstlane_b32 s30, v1               ; wave
    s_cmp_ge_u32 s29, 28
    s_cbranch_scc1 K1_aux
    s_mul_i32 s31, s29, 9363
    s_lshr_b32 s31, s31, 16                   ; r/7
    s_mul_i32 s32, s31, 7
    s_sub_u32 s32, s29, s32                   ; cb7
    s_and_b32 s33, s28, 1                     ; branch
    s_lshr_b32 s34, s28, 1
    s_lshl_b32 s34, s34, 2
    s_add_u32 s34, s34, s31
    s_lshl_b32 s35, s34, 1
    s_add_u32 s35, s35, s32
    s_mul_i32 s36, s35, 9363
    s_lshr_b32 s36, s36, 16
    s_mul_i32 s36, s36, 7
    s_sub_u32 s35, s35, s36
    v_lshrrev_b32 v3, 3, v2                   ; l/8
    v_and_b32 v4, 7, v2
    v_lshrrev_b32 v5, 4, v2                   ; l/16
    v_xor_b32 v6, v4, v5
    s_lshl_b32 s36, s34, 7
    s_lshl_b32 s37, s30, 4
    s_add_u32 s36, s36, s37
    v_add_u32 v7, s36, v3
    v_mul_u32_u24 v7, 896, v7
    v_lshl_add_u32 v8, v6, 4, v7              ; xa
    v_xor_b32 v6, 4, v6
    v_lshl_add_u32 v9, v6, 4, v7
    v_add_u32 v9, 7168, v9                    ; xb
    v_and_b32 v5, 1, v5
    v_lshlrev_b32 v5, 2, v5
    v_xor_b32 v5, v4, v5
    s_lshl_b32 s37, s30, 3
    v_add_u32 v7, s37, v3
    v_mul_u32_u24 v7, 2688, v7
    v_lshl_add_u32 v10, v5, 4, v7             ; w
    s_mul_i32 s38, s32, 384
    s_lshl_b32 s39, s30, 11
    s_lshl_b32 s40, s30, 10
    s_add_u32 s40, s40, 16384
    s_waitcnt lgkmcnt(0)
    """)
    srd(a, 16, 4, 1835008)
    a("""
    s_cmp_eq_u32 s33, 0
    s_cselect_b32 s20, s6, s8
    s_cselect_b32 s21, s7, s9
    s_mov_b32 s22, 1204224
    s_mov_b32 s23, 0x00020000
    """)
    srd(a, 24, 12, WS_BYTES)

    def dma(slot):
        a(f"""
        s_lshl_b32 s42, s35, 7
        s_mul_i32 s43, s35, 172032
        s_add_u32 m0, s39, {slot}
        s_add_u32 s43, s43, s38
        buffer_load_dwordx4 v8, s[16:19], s42 offen lds
        s_add_u32 m0, m0, 1024
        s_add_u32 s35, s35, 1
        buffer_load_dwordx4 v9, s[16:19], s42 offen lds
        s_add_u32 m0, s40, {slot}
        s_add_u32 s44, s43, 128
        buffer_load_dwordx4 v10, s[20:23], s43 offen lds
        s_add_u32 m0, m0, 8192
        s_add_u32 s45, s43, 256
        buffer_load_dwordx4 v10, s[20:23], s44 offen lds
        s_add_u32 m0, m0, 8192
        s_cmp_eq_u32 s35, 7
        buffer_load_dwordx4 v10, s[20:23], s45 offen lds
        s_cselect_b32 s35, 0, s35
        """)
    a("s_mov_b32 s41, 0")
    a("K1_pro:")
    dma("s41")
    a(f"""
    s_add_u32 s41, s41, {SLOT}
    s_cmp_lt_u32 s41, {4*SLOT}
    s_cbranch_scc1 K1_pro
    """)
    XR, WR, XF, WF, ACC = 12, 16, 20, 36, 84
    a(f"""
    v_and_b32 v3, 31, v2                      ; n
    v_lshrrev_b32 v4, 5, v2                   ; hf
    s_and_b32 s46, s30, 3
    s_lshr_b32 s47, s30, 2
    v_lshrrev_b32 v5, 1, v3
    v_and_b32 v5, 7, v5
    v_xor_b32 v5, v4, v5
    s_lshl_b32 s48, s46, 12
    v_lshlrev_b32 v6, 7, v3
    v_lshl_add_u32 v6, v5, 4, v6
    v_add_u32 v{XR}, s48, v6
    v_xor_b32 v{XR+1}, 32, v{XR}
    v_xor_b32 v{XR+2}, 64, v{XR}
    v_xor_b32 v{XR+3}, 96, v{XR}
    v_bfe_u32 v5, v2, 2, 2                    ; r
    v_lshl_add_u32 v6, v4, 3, v5              ; 8hf + r
    v_lshlrev_b32 v6, 7, v6
    v_and_b32 v7, 3, v2
    v_lshl_add_u32 v6, v7, 3, v6
    v_bfe_u32 v7, v2, 4, 1
    v_lshl_add_u32 v6, v7, 5, v6
    v_bfe_u32 v7, v2, 3, 1                    ; r>>1
    v_lshl_add_u32 v6, v7, 6, v6              ; (half0 ^ r>>1)*64
    v_add_u32 v6, 16384, v6
    s_mul_i32 s48, s47, 3
    """)
    for i in range(3):
        a(f"""
        s_add_u32 s49, s48, {i}
        s_lshr_b32 s50, s49, 1
        s_lshl_b32 s50, s50, 13
        s_and_b32 s49, s49, 1
        s_lshl_b32 s49, s49, 6
        v_xor_b32 v{WR+i}, s49, v6
        v_add_u32 v{WR+i}, s50, v{WR+i}
        """)
    for i in range(48):
        a(f"v_mov_b32 v{ACC+i}, 0")
    a(f"""
    s_mul_i32 s51, s32, 6
    s_add_u32 s51, s51, s48
    s_mov_b32 s52, 0                          ; iteration
    s_waitcnt vmcnt(15)
    s_cmp_ge_u32 s51, 28
    s_cbranch_scc1 K1_C_in
    s_cmp_eq_u32 s51, 27
    s_cbranch_scc1 K1_B_in
    s_branch K1_A_in
    """)

    def reads(st):
        a(f"ds_read_b128 {vr(XF+4*st,4)}, v{XR+st}")
        for i in range(3):
            b = WF + (st * 3 + i) * 4
            a(f"ds_read_b64_tr_b16 {vr(b,2)}, v{WR+i} offset:{st*2048}")
            a(f"ds_read_b64_tr_b16 {vr(b+2,2)}, v{WR+i} offset:{st*2048+512}")

    def mm(st, types):
        for i in range(3):
            w = WF + (st * 3 + i) * 4
            x = XF + 4 * st
            if types[i] == "q":
                a(mfma(ACC + 16 * i, w, x, ACC + 16 * i))
            else:
                a(mfma(ACC + 16 * i, x, w, ACC + 16 * i))

    def epi_qk(i):
        c = ACC + 16 * i
        a(f"""
        s_add_u32 s53, s51, {i}
        s_cmp_ge_u32 s53, 14
        s_cselect_b32 s54, 14, 0
        s_cselect_b32 s55, 1.0, s60
        s_cselect_b32 s56, s62, s61
        s_cselect_b32 s57, s64, s63
        s_sub_u32 s53, s53, s54
        s_lshl_b32 s53, s53, 3
        """)
        for r in range(16):
            a(f"v_mul_f32 v{c+r}, s55, v{c+r}")
        for r in range(8):
            a(f"v_cvt_pk_bf16_f32 v{c+r}, v{c+2*r}, v{c+2*r+1}")
        for q in range(4):
            t = 20 + 2 * q
            a(f"""
            v_add_u32 v{t}, s53, v4
            s_add_u32 s53, s53, 2
            v_mul_u32_u24 v{t+1}, 9363, v{t}
            v_lshrrev_b32 v{t+1}, 16, v{t+1}
            v_mad_u32_u24 v{t+1}, v{t+1}, s56, v5
            v_lshl_add_u32 v{t+1}, v{t}, 8, v{t+1}
            buffer_store_dwordx2 {vr(c+2*q,2)}, v{t+1}, s[24:27], s57 offen {ST}
            """)

    def epi_v(i):
        c = ACC + 16 * i
        t = 28 + 2 * i
        a(f"""
        s_add_u32 s53, s51, {i-28}
        s_lshl_b32 s53, s53, 5
        v_add_u32 v{t}, s53, v3
        v_mul_u32_u24 v{t+1}, 2341, v{t}
        v_lshrrev_b32 v{t+1}, 16, v{t+1}
        v_mad_u32_u24 v{t+1}, v{t+1}, s65, v6
        v_lshl_add_u32 v{t+1}, v{t}, 4, v{t+1}
        """)
        for r in range(8):
            a(f"v_cvt_pk_bf16_f32 v{c+r}, v{c+2*r}, v{c+2*r+1}")
        a(f"buffer_store_dwordx4 {vr(c,4)}, v{t+1}, s[24:27], s64 offen offset:2048 {ST}")
        a(f"buffer_store_dwordx4 {vr(c+4,4)}, v{t+1}, s[24:27], s64 offen offset:3072 {ST}")

    for var, types in (("A", "qqq"), ("B", "qvv"), ("C", "vvv")):
        a(f"""
        K1_{var}_loop:
        s_cmp_lt_u32 s52, 5
        s_cbranch_scc1 K1_{var}_w10
        s_cmp_eq_u32 s52, 5
        s_cbranch_scc1 K1_{var}_w5
        s_waitcnt vmcnt(0)
        K1_{var}_w5:
        s_waitcnt vmcnt(5)
        K1_{var}_w10:
        s_waitcnt vmcnt(10)
        K1_{var}_in:
        s_barrier
        """)
        reads(0)
        reads(1)
        a(f"""
        s_sub_u32 s41, s52, 1
        s_cmp_ge_u32 s41, 3
        s_cbranch_scc1 K1_{var}_nodma
        s_mul_i32 s41, s41, {SLOT}
        """)
        dma("s41")
        a(f"K1_{var}_nodma:")
        a("s_waitcnt lgkmcnt(7)")
        mm(0, types)
        reads(2)
        a("s_waitcnt lgkmcnt(7)")
        mm(1, types)
        reads(3)
        a(f"""
        s_movk_i32 s41, {SLOT >> 2}
        s_cmp_eq_u32 s52, 3
        s_cselect_b32 s41, {(-3*SLOT >> 2) & 0xffffffff}, s41
        s_lshl_b32 s41, s41, 2
        """)
        a("s_waitcnt lgkmcnt(7)")
        mm(2, types)
        for r in list(range(XR, XR + 4)) + list(range(WR, WR + 3)):
            a(f"v_add_u32 v{r}, s41, v{r}")
        a("s_waitcnt lgkmcnt(0)")
        mm(3, types)
        a(f"""
        s_add_u32 s52, s52, 1
        s_cmp_lt_u32 s52, 7
        s_cbranch_scc1 K1_{var}_loop
        """)
        a(f"""
        s_lshl_b32 s58, s33, 10
        s_lshl_b32 s59, s34, 2
        s_add_u32 s58, s58, s59
        s_add_u32 s58, s58, s46
        s_mov_b32 s60, {f32(math.log2(math.e) / math.sqrt(28.0))}
        s_mov_b32 s61, {64*2048-1792}
        s_mov_b32 s62, {64*4096-1792}
        s_lshl_b32 s63, s58, 11
        s_lshl_b32 s64, s58, 12
        s_add_u32 s64, s64, {KVF}
        s_mov_b32 s65, {64*4096-448}
        v_lshlrev_b32 v5, 3, v3
        v_lshlrev_b32 v6, 9, v4
        s_nop 7
        """)
        for i in range(3):
            (epi_qk if types[i] == "q" else epi_v)(i)
        a("s_endpgm")

    a(f"""
    K1_aux:
    s_sub_u32 s29, s29, 28
    s_lshl_b32 s28, s28, 2
    s_add_u32 s28, s28, s29                   ; u = 0..31
    v_lshrrev_b32 v3, 3, v2
    v_and_b32 v4, 7, v2
    s_lshl_b32 s31, s28, 6
    s_lshl_b32 s32, s30, 3
    s_add_u32 s31, s31, s32
    v_add_u32 v5, s31, v3                     ; token
    v_mul_u32_u24 v6, 896, v5
    v_lshl_add_u32 v6, v4, 4, v6
    v_lshlrev_b32 v7, 4, v4
    s_waitcnt lgkmcnt(0)
    """)
    srd(a, 16, 4, 1835008)
    srd(a, 20, 10, 896)
    srd(a, 24, 12, WS_BYTES)
    for i in range(7):
        a(f"buffer_load_dwordx4 {vr(16+4*i,4)}, v6, s[16:19], 0 offen offset:{128*i}")
        a(f"buffer_load_dwordx4 {vr(48+4*i,4)}, v7, s[20:23], 0 offen offset:{128*i}")
    a(f"""
    v_lshrrev_b32 v8, 4, v2
    v_and_b32 v9, 15, v2
    s_lshl_b32 s33, s28, 6
    s_add_u32 s33, s33, s32                   ; hb*64 + w*8
    v_add_u32 v8, s33, v8
    v_lshlrev_b32 v10, 11, v8
    v_lshl_add_u32 v10, v9, 4, v10            ; Q pad
    v_lshlrev_b32 v11, 12, v8
    v_lshrrev_b32 v13, 2, v9
    v_and_b32 v14, 3, v9
    v_lshl_add_u32 v12, v13, 9, v11
    v_lshl_add_u32 v12, v14, 4, v12           ; V pad
    v_lshl_add_u32 v11, v9, 4, v11            ; K pad
    v_mov_b32 v80, 0
    v_mov_b32 v81, 0
    v_mov_b32 v82, 0
    v_mov_b32 v83, 0
    v_mov_b32 v84, 0x3f803f80
    v_mov_b32 v85, 0x3f803f80
    v_mov_b32 v86, 0x3f803f80
    v_mov_b32 v87, 0x3f803f80
    s_mov_b32 s34, {4*2048}
    s_mov_b32 s35, {KVF}
    s_mov_b32 s36, {KVF+4*4096}
    buffer_store_dwordx4 v[80:83], v10, s[24:27], 0 offen offset:1792 {ST}
    buffer_store_dwordx4 v[80:83], v10, s[24:27], s34 offen offset:1792 {ST}
    buffer_store_dwordx4 v[80:83], v11, s[24:27], s35 offen offset:1792 {ST}
    buffer_store_dwordx4 v[80:83], v11, s[24:27], s36 offen offset:1792 {ST}
    buffer_store_dwordx4 v[84:87], v12, s[24:27], s35 offen offset:{2048+448} {ST}
    buffer_store_dwordx4 v[84:87], v12, s[24:27], s36 offen offset:{2048+448} {ST}
    v_mov_b32 v13, 0
    s_waitcnt vmcnt(6)
    """)
    for i in range(28):
        a(f"""
        v_and_b32 v14, 0xffff0000, v{16+i}
        v_and_b32 v15, 0xffff0000, v{48+i}
        v_fmac_f32 v13, v14, v15
        v_lshlrev_b32 v14, 16, v{16+i}
        v_lshlrev_b32 v15, 16, v{48+i}
        v_fmac_f32 v13, v14, v15
        """)
    a(f"""
    s_nop 1
    v_add_f32_dpp v13, v13, v13 quad_perm:[1,0,3,2] row_mask:0xf bank_mask:0xf
    s_nop 1
    v_add_f32_dpp v13, v13, v13 quad_perm:[2,3,0,1] row_mask:0xf bank_mask:0xf
    s_nop 1
    v_add_f32_dpp v13, v13, v13 row_half_mirror row_mask:0xf bank_mask:0xf
    v_mul_f32 v13, {f32(-math.log2(math.e))}, v13
    v_exp_f32 v13, v13
    s_nop 0
    v_add_f32 v13, 1.0, v13
    v_rcp_f32 v13, v13
    v_lshlrev_b32 v5, 2, v5
    s_mov_b32 s34, {GOFF}
    v_cmp_eq_u32 vcc, 0, v4
    s_and_saveexec_b64 s[36:37], vcc
    buffer_store_dword v13, v5, s[24:27], s34 offen {ST}
    K1_end:
    s_endpgm
    """)
    return k, 132


def k2(a, opt):
    k = "attn_kernel"
    header(a, k)
    ST = opt.get("k2_store", "")
    O, S, Q, K, V = 16, 80, 144, 176, 208
    IDX, VQ, VK, VV, VG = 4, 5, 6, 7, 8
    a(f"""
    s_cmp_ge_u32 s2, 256
    s_cbranch_scc1 K2_end
    s_load_dwordx2 s[12:13], s[0:1], 72       ; ws
    v_lshrrev_b32 v1, 6, v0
    v_and_b32 v2, 63, v0                      ; lane
    s_and_b32 s28, s2, 7
    s_lshr_b32 s29, s2, 3
    v_readfirstlane_b32 s30, v1               ; wave
    s_lshl_b32 s28, s28, 2
    s_and_b32 s31, s29, 3
    s_add_u32 s31, s31, s28                   ; hb
    s_lshr_b32 s32, s29, 2
    s_and_b32 s33, s30, 3
    s_lshr_b32 s34, s30, 2
    v_lshlrev_b32 v{VQ}, 3, v2                ; lane*8
    v_and_b32 v3, 0x33, v2
    v_and_b32 v9, 4, v2
    v_lshl_or_b32 v3, v9, 1, v3
    v_and_b32 v9, 8, v2
    v_lshrrev_b32 v9, 1, v9
    v_or_b32 v3, v3, v9
    v_lshlrev_b32 v{VK}, 3, v3
    v_lshlrev_b32 v{VV}, 4, v2
    s_lshl_b32 s35, s32, 3
    s_lshl_b32 s36, s34, 2
    s_add_u32 s35, s35, s36
    s_lshl_b32 s36, s31, 6                    ; hb*64
    s_lshl_b32 s37, s33, 4
    s_add_u32 s37, s37, s36
    s_lshl_b32 s37, s37, 12
    s_add_u32 s37, s37, {KVF}
    s_lshl_b32 s38, s32, 1
    s_mov_b32 s39, s38                        ; for V
    s_add_u32 s36, s36, s35
    s_waitcnt lgkmcnt(0)
    """)
    srd(a, 24, 12, WS_BYTES)

    def loadK(u):
        a(f"""
        s_and_b32 s40, s38, 15
        s_lshl_b32 s40, s40, 12
        s_add_u32 s40, s40, s37
        s_add_u32 s38, s38, 1
        """)
        for i in range(4):
            a(f"buffer_load_dwordx2 {vr(K+8*u+2*i,2)}, v{VK}, s[24:27], s40 offen offset:{512*i}")

    def loadV(u):
        a(f"""
        s_and_b32 s41, s39, 15
        s_lshl_b32 s41, s41, 12
        s_add_u32 s41, s41, s37
        s_add_u32 s39, s39, 1
        """)
        for i in range(2):
            a(f"buffer_load_dwordx4 {vr(V+8*u+4*i,4)}, v{VV}, s[24:27], s41 offen offset:{2048+1024*i}")

    def loadQ(j):
        a(f"""
        s_add_u32 s42, s33, {j}
        s_and_b32 s42, s42, 3
        s_add_u32 s42, s42, s36
        s_lshl_b32 s42, s42, 11
        """)
        for i in range(4):
            a(f"buffer_load_dwordx2 {vr(Q+8*j+2*i,2)}, v{VQ}, s[24:27], s42 offen offset:{512*i}")

    loadK(0)
    loadQ(0)
    loadQ(1)
    loadV(0)
    loadQ(2)
    loadQ(3)
    a(f"""
    v_and_b32 v9, 31, v2
    s_add_u32 s43, s35, s33
    s_lshl_b32 s42, s43, 7
    s_add_u32 s42, s42, {GOFF}
    v_lshlrev_b32 v9, 2, v9
    buffer_load_dword v{VG}, v9, s[24:27], s42 offen
    """)
    loadK(1); loadV(1); loadK(2); loadV(2); loadK(3)
    a(f"v_mov_b32 v{IDX}, 0xdddddddd")
    for i in range(64):
        a(f"v_mov_b32 v{O+i}, 0")
    for i in range(16):
        a(f"v_mov_b32 v{S+48+i}, 0")
    for i in range(8):
        a(f"v_mov_b32 v{V+24+i}, 0")
    a("s_mov_b32 s44, 0")
    a("s_mov_b32 s45, 4")
    a("s_waitcnt vmcnt(31)")
    a(mfma(S, K, Q))
    a(mfma(S, K + 4, Q + 4, S))
    a("s_waitcnt vmcnt(16)")
    a("s_nop 10")

    def smf(o, v, s):
        return f"v_smfmac_f32_32x32x32_bf16 {vr(o,16)}, {vr(v,4)}, {vr(s,8)}, v{IDX}"

    def ex(j, r0):
        for r in range(r0, r0 + 4):
            a(f"v_exp_f32 v{S+16*j+r}, v{S+16*j+r}")

    a(".p2align 6")
    a("K2_loop:")
    for u in range(4):
        for j in range(4):
            nj = (j + 1) % 4
            ku = u if j < 3 else (u + 1) % 4
            pj = (j - 1) % 4
            vu = u if j > 0 else (u - 1) % 4
            if j == 3:
                a("s_waitcnt vmcnt(12)")
            a(mfma(S + 16 * nj, K + 8 * ku, Q + 8 * nj))
            ex(j, 0)
            a(mfma(S + 16 * nj, K + 8 * ku + 4, Q + 8 * nj + 4, S + 16 * nj))
            ex(j, 4)
            a(smf(O + 16 * pj, V + 8 * vu, S + 16 * pj))
            if j == 1:
                loadV((u - 1) % 4)
            if j == 3:
                loadK(u)
            ex(j, 8)
            a(smf(O + 16 * pj, V + 8 * vu + 4, S + 16 * pj + 8))
            ex(j, 12)
    a("""
    s_sub_u32 s45, s45, 1
    s_cmp_lg_u32 s45, 0
    s_cbranch_scc1 K2_loop
    s_nop 1
    """)
    a(smf(O + 48, V + 24, S + 48))
    a(smf(O + 48, V + 28, S + 56))
    a("K2_reduce:")
    a(f"""
    s_lshl_b32 s46, s34, 2                    ; qh*4
    """)
    for j in (1, 2, 3):
        a(f"""
        s_add_u32 s47, s33, {j}
        s_and_b32 s47, s47, 3
        s_add_u32 s47, s47, s46
        s_mul_i32 s47, s47, 12288
        v_add_u32 v{9+j}, s47, v{VV}
        """)
    a("s_mul_i32 s47, s30, 12288")
    a(f"v_add_u32 v9, s47, v{VV}")
    a("s_nop 4")
    for j in (1, 2, 3):
        if j == 3:
            a("s_nop 7")
        for r in range(4):
            a(f"ds_write_b128 v{9+j}, {vr(O+16*j+4*r,4)} offset:{(j-1)*4096+r*1024}")
    a("v_mov_b32 v13, 0")
    a("v_mov_b32 v14, 98304")
    a("ds_write_b32 v14, v13")
    a("s_waitcnt lgkmcnt(0)")
    a("s_barrier")
    for j in (1, 2, 3):
        for r in range(4):
            a(f"ds_read_b128 {vr(O+16*j+4*r,4)}, v9 offset:{(j-1)*4096+r*1024}")
    a(f"""
    s_cmp_ge_u32 s31, 16
    s_cselect_b32 s48, -1.0, 1.0
    s_cselect_b32 s49, 1.0, 0
    s_waitcnt vmcnt(0)
    v_mov_b32 v10, s49
    v_fma_f32 v10, v{VG}, s48, v10            ; g or 1-g
    """)
    for j in (1, 2, 3):
        a(f"s_waitcnt lgkmcnt({8-4*j+4 if j < 3 else 0})")
        for r in range(16):
            a(f"v_add_f32 v{O+r}, v{O+r}, v{O+16*j+r}")
    a(f"""
    v_mov_b32 v11, v{O+12}
    v_mov_b32 v12, v{O+12}
    v_mov_b32 v13, 0
    s_nop 0
    v_permlane32_swap_b32 v11, v12
    """)
    for r in range(16):
        a(f"v_fma_f32 v13, v{O+r}, 0, v13")
    a(f"""
    v_cmp_gt_u32 vcc, 32, v2
    v_rcp_f32 v11, v12
    v_add_f32 v13, v13, v12
    v_mul_f32 v11, v11, v10
    v_cndmask_b32 v15, 0, v11, vcc
    """)
    for r in range(12):
        a(f"v_mul_f32 v{O+r}, v{O+r}, v11")
    for r in range(12, 16):
        a(f"v_mul_f32 v{O+r}, v{O+r}, v15")
    for r in range(8):
        a(f"v_cvt_pk_bf16_f32 v{O+r}, v{O+2*r}, v{O+2*r+1}")
    a(f"""
    s_lshl_b32 s47, s43, 5
    s_add_u32 s47, s47, s31
    s_lshl_b32 s47, s47, 11
    s_add_u32 s47, s47, {OF}
    buffer_store_dwordx4 {vr(O,4)}, v{VV}, s[24:27], s47 offen {ST}
    buffer_store_dwordx4 {vr(O+4,4)}, v{VV}, s[24:27], s47 offen offset:1024 {ST}
    s_cmp_lg_u32 s44, 0
    s_cbranch_scc1 K2_end
    ; unshifted softmax is only kept when the row sums are comfortably inside the f32 range
    v_cmp_nle_f32 vcc, {f32(2.0**-60)}, v13
    v_cmp_nge_f32 s[48:49], {f32(2.0**60)}, v13
    """.replace(f"v_cmp_nge_f32 s[48:49], {f32(2.0**60)}, v13", f"v_mov_b32 v11, {f32(2.0**60)}\n v_cmp_nge_f32 s[48:49], v11, v13"))
    a(f"""
    s_or_b64 vcc, vcc, s[48:49]
    s_cbranch_vccz K2_ok
    v_mov_b32 v13, 1
    ds_write_b32 v14, v13
    K2_ok:
    s_waitcnt lgkmcnt(0)
    s_barrier
    ds_read_b32 v13, v14
    s_waitcnt lgkmcnt(0)
    v_readfirstlane_b32 s47, v13
    s_cmp_eq_u32 s47, 0
    s_cbranch_scc1 K2_end
    """)
    M = 240
    a("s_waitcnt vmcnt(0)")
    a("s_mov_b32 s44, 1")
    for j in range(4):
        a(f"v_mov_b32 v{M+j}, 0xff800000")
    a("s_mov_b32 s45, 16")
    a("K2_f1:")
    loadK(0)
    a("s_waitcnt vmcnt(0)")
    for j in range(4):
        a(mfma(S + 16 * j, K, Q + 8 * j))
        a(mfma(S + 16 * j, K + 4, Q + 8 * j + 4, S + 16 * j))
    a("s_nop 15")
    for j in range(4):
        for r in range(0, 16, 2):
            a(f"v_max3_f32 v{M+j}, v{M+j}, v{S+16*j+r}, v{S+16*j+r+1}")
    a("""
    s_sub_u32 s45, s45, 1
    s_cmp_lg_u32 s45, 0
    s_cbranch_scc1 K2_f1
    """)
    a("v_lshlrev_b32 v9, 2, v2")
    for j in range(4):
        a(f"""
        s_add_u32 s47, s33, {j}
        s_and_b32 s47, s47, 3
        s_add_u32 s47, s47, s46
        s_lshl_b32 s47, s47, 10
        v_add_u32 v{10+j}, s47, v9
        """)
    a("s_lshl_b32 s47, s33, 8")
    a("s_barrier")
    for j in range(4):
        a(f"v_add_u32 v9, s47, v{10+j}")
        a(f"ds_write_b32 v9, v{M+j}")
    a("s_waitcnt lgkmcnt(0)")
    a("s_barrier")
    for j in range(4):
        for q in range(4):
            a(f"ds_read_b32 v{S+4*j+q}, v{10+j} offset:{256*q}")
    a("s_waitcnt lgkmcnt(0)")
    for j in range(4):
        a(f"""
        v_max3_f32 v{M+j}, v{S+4*j}, v{S+4*j+1}, v{S+4*j+2}
        v_max_f32 v{M+j}, v{M+j}, v{S+4*j+3}
        v_mov_b32 v9, v{M+j}
        s_nop 1
        v_permlane32_swap_b32 v9, v{M+j}
        s_nop 1
        v_max_f32 v{M+j}, v{M+j}, v9
        """)
    for i in range(64):
        a(f"v_mov_b32 v{O+i}, 0")
    a("s_mov_b32 s45, 16")
    a("s_mov_b32 s39, s38")
    a("s_barrier")
    a("K2_f2:")
    loadK(0)
    loadV(0)
    a("s_waitcnt vmcnt(0)")
    for j in range(4):
        a(mfma(S + 16 * j, K, Q + 8 * j))
        a(mfma(S + 16 * j, K + 4, Q + 8 * j + 4, S + 16 * j))
    a("s_nop 15")
    for j in range(4):
        for r in range(16):
            a(f"v_sub_f32 v{S+16*j+r}, v{S+16*j+r}, v{M+j}")
        for r in range(16):
            a(f"v_exp_f32 v{S+16*j+r}, v{S+16*j+r}")
    a("s_nop 3")
    for j in range(4):
        a(smf(O + 16 * j, V, S + 16 * j))
        a(smf(O + 16 * j, V + 4, S + 16 * j + 8))
    a("""
    s_nop 15
    s_sub_u32 s45, s45, 1
    s_cmp_lg_u32 s45, 0
    s_cbranch_scc1 K2_f2
    s_branch K2_reduce
    K2_end:
    s_endpgm
    """)
    return k, 244


def k3(a, opt):
    k = "proj_kernel"
    header(a, k)
    OFR, WFR, ACC = 16, 80, 112
    a(f"""
    s_cmp_ge_u32 s2, 224
    s_cbranch_scc1 K3_end
    s_load_dwordx2 s[4:5], s[0:1], 16         ; A_wo
    s_load_dwordx2 s[6:7], s[0:1], 40         ; B_wo
    s_load_dwordx2 s[8:9], s[0:1], 56         ; out
    s_load_dwordx2 s[12:13], s[0:1], 72       ; ws
    v_lshrrev_b32 v1, 6, v0
    v_and_b32 v2, 63, v0
    s_and_b32 s28, s2, 7
    s_lshr_b32 s29, s2, 3
    v_readfirstlane_b32 s30, v1               ; wave
    s_mul_i32 s31, s29, 9363
    s_lshr_b32 s31, s31, 16
    s_mul_i32 s32, s31, 7
    s_sub_u32 s32, s29, s32
    s_lshl_b32 s28, s28, 2
    s_add_u32 s31, s31, s28
    s_and_b32 s33, s30, 3                     ; k quarter
    s_lshr_b32 s34, s30, 2
    v_lshlrev_b32 v3, 4, v2
    v_lshrrev_b32 v4, 3, v2
    v_and_b32 v5, 7, v2
    v_bfe_u32 v6, v2, 4, 1
    v_lshlrev_b32 v6, 2, v6
    v_xor_b32 v5, v5, v6
    v_mul_u32_u24 v4, 896, v4
    v_lshl_add_u32 v4, v5, 4, v4
    s_mul_i32 s35, s33, {112*896}
    s_lshl_b32 s36, s32, 7
    s_add_u32 s35, s35, s36
    s_mul_i32 s36, s30, {112*128}
    s_lshl_b32 s37, s31, 1
    s_add_u32 s37, s37, s34
    s_lshl_b32 s37, s37, 5
    s_lshl_b32 s38, s33, 3
    s_add_u32 s37, s37, s38
    s_lshl_b32 s37, s37, 11
    s_add_u32 s37, s37, {OF}
    s_waitcnt lgkmcnt(0)
    s_cmp_eq_u32 s34, 0
    s_cselect_b32 s16, s4, s6
    s_cselect_b32 s17, s5, s7
    s_mov_b32 s18, {448*896}
    s_mov_b32 s19, 0x00020000
    """)
    srd(a, 20, 8, 2048 * 896)
    srd(a, 24, 12, WS_BYTES)
    a("s_mov_b32 m0, s36")
    a("s_nop 0")
    for i in range(14):
        a(f"buffer_load_dwordx4 v4, s[16:19], s35 offen lds")
        if i < 13:
            a("s_add_u32 m0, m0, 1024")
            a(f"s_add_u32 s35, s35, {8*896}")
    for i in range(16):
        if i % 4 == 0 and i:
            a("s_add_u32 s37, s37, 4096")
        a(f"buffer_load_dwordx4 {vr(OFR+4*i,4)}, v3, s[24:27], s37 offen offset:{(i%4)*1024}")
    a(f"""
    v_mov_b32 v8, 0
    v_mov_b32 v9, 0
    v_lshlrev_b32 v7, 3, v2
    ds_write_b64 v7, v[8:9] offset:0
    """.replace("ds_write_b64 v7, v[8:9] offset:0", f"v_add_u32 v7, {896*128}, v7\n ds_write_b64 v7, v[8:9]"))
    a(f"""
    v_lshrrev_b32 v5, 5, v2                   ; hf
    v_bfe_u32 v6, v2, 2, 2                    ; r
    v_lshl_add_u32 v6, v5, 2, v6
    v_lshlrev_b32 v6, 7, v6
    v_and_b32 v7, 3, v2
    v_lshl_add_u32 v6, v7, 3, v6
    v_bfe_u32 v7, v2, 4, 1
    v_lshl_add_u32 v6, v7, 5, v6
    v_bfe_u32 v7, v2, 3, 1
    v_lshl_add_u32 v6, v7, 6, v6
    s_mul_i32 s38, s33, {224*128}
    v_add_u32 v10, s38, v6
    v_xor_b32 v11, 64, v10
    s_waitcnt vmcnt(16) lgkmcnt(0)
    s_barrier
    """)

    def reads(i):
        off = (28 * (i // 2) + 16 * (i % 2)) * 128
        b = WFR + (i % 4) * 8
        for ct in range(2):
            a(f"ds_read_b64_tr_b16 {vr(b+4*ct,2)}, v{10+ct} offset:{off}")
            a(f"ds_read_b64_tr_b16 {vr(b+4*ct+2,2)}, v{10+ct} offset:{off+1024}")
    reads(0); reads(1); reads(2)
    for i in range(16):
        if i + 3 < 16:
            reads(i + 3)
        rem = min(3, 15 - i)
        a(f"s_waitcnt vmcnt({15-i}) lgkmcnt({4*rem})")
        b = WFR + (i % 4) * 8
        for ct in range(2):
            a(mfma(ACC + 16 * ct, b + 4 * ct, OFR + 4 * i, None if i == 0 else ACC + 16 * ct))
    RS = 272
    a(f"""
    v_and_b32 v6, 31, v2
    s_lshl_b32 s38, s33, 6
    s_lshl_b32 s39, s34, 5
    s_add_u32 s38, s38, s39
    v_add_u32 v6, s38, v6
    v_mul_u32_u24 v6, {RS}, v6
    v_lshl_add_u32 v6, v5, 4, v6
    v_lshrrev_b32 v7, 3, v0
    v_and_b32 v8, 7, v0
    v_mul_u32_u24 v9, {RS}, v7
    v_lshl_add_u32 v9, v8, 5, v9
    s_lshl_b32 s38, s31, 6
    v_add_u32 v7, s38, v7
    v_mul_u32_u24 v7, 896, v7
    v_lshl_add_u32 v7, v8, 4, v7
    s_lshl_b32 s38, s32, 7
    s_barrier
    s_nop 4
    """)
    for ct in range(2):
        for q in range(4):
            a(f"ds_write_b128 v6, {vr(ACC+16*ct+4*q,4)} offset:{ct*128+q*32}")
    a("s_waitcnt lgkmcnt(0)")
    a("s_barrier")
    for q in range(4):
        for h in range(2):
            a(f"ds_read_b128 {vr(16+8*q+4*h,4)}, v9 offset:{q*64*RS+16*h}")
    for q in range(1, 4):
        a(f"s_waitcnt lgkmcnt({6-2*q})")
        for r in range(8):
            a(f"v_add_f32 v{16+r}, v{16+r}, v{16+8*q+r}")
    for r in range(4):
        a(f"v_cvt_pk_bf16_f32 v{16+r}, v{16+2*r}, v{16+2*r+1}")
    a("""
    buffer_store_dwordx4 v[16:19], v7, s[20:23], s38 offen
    K3_end:
    s_endpgm
    """)
    return k, 144


def gen(opt):
    a = A()
    launches = [("qkv_kernel", 256, 163840), ("attn_kernel", 256, 98432), ("proj_kernel", 224, 115712)]
    head = "; generated by gen.py (hand-written generator)\n"
    for kn, g, lds in launches:
        head += f"; @launch kernel={kn} grid=({g},1,1) block=(512,1,1) lds={lds}\n"
    a('.amdgcn_target "amdgcn-amd-amdhsa--gfx950"')
    a(".text")
    ks = [k1(a, opt), k2(a, opt), k3(a, opt)]
    out = head + a.text() + '.section .rodata,"a"\n'
    for kn, nv in ks:
        out += ".p2align 6\n" + desc(kn, nv)
    return out


if __name__ == "__main__":
    opt = dict(x.split("=", 1) for x in sys.argv[2:])
    path = sys.argv[1] if len(sys.argv) > 1 else f"cdna_kernels/{NAME}.s"
    open(path, "w").write(gen(opt))
```

```python
import sys, struct, math

NAME = "gated_mix__softmax_full_mha__mha_block__prompt"
QF = 0
KVF = 4 << 20
GOFF = 12 << 20
OF = 13 << 20
WS_BYTES = 17 << 20


def f32(x):
    return "0x%08x" % struct.unpack("<I", struct.pack("<f", x))[0]


class A:
    def __init__(self):
        self.L = []

    def __call__(self, s=""):
        for line in s.split("\n"):
            line = line.rstrip()
            if not line.strip():
                continue
            t = line.strip()
            if t.endswith(":") or t.startswith("."):
                self.L.append(t)
            else:
                self.L.append("    " + t)

    def text(self):
        return "\n".join(self.L) + "\n"


def vr(a, n):
    return f"v[{a}:{a+n-1}]"


def srd(a, d, base, nrec):
    a(f"s_mov_b32 s{d}, s{base}")
    a(f"s_mov_b32 s{d+1}, s{base+1}")
    a(f"s_mov_b32 s{d+2}, {nrec}")
    a(f"s_mov_b32 s{d+3}, 0x00020000")


def header(a, k):
    a(f".globl {k}")
    a(".p2align 8")
    a(f".type {k},@function")
    a(f"{k}:")


def desc(k, nv):
    acc = (nv + 3) // 4 * 4
    return f""".amdhsa_kernel {k}
  .amdhsa_next_free_vgpr {nv}
  .amdhsa_next_free_sgpr 102
  .amdhsa_accum_offset {acc}
  .amdhsa_group_segment_fixed_size 0
  .amdhsa_kernarg_size 80
  .amdhsa_user_sgpr_count 2
  .amdhsa_user_sgpr_kernarg_segment_ptr 1
  .amdhsa_system_sgpr_workgroup_id_x 1
.end_amdhsa_kernel
"""


STAMP = 16 << 20
STAMP = 20 << 20


def stamp0(a, opt):
    if opt.get("stamp"):
        a("s_memrealtime s[92:93]")
        a("s_memtime s[94:95]")


def stamp(a, opt, kid, slot, wsreg=12):
    if not opt.get("stamp"):
        return
    a(f"""
    s_memrealtime s[96:97]
    s_memtime s[98:99]
    s_mov_b32 s88, s{wsreg}
    s_mov_b32 s89, s{wsreg+1}
    s_mov_b32 s90, {32 << 20}
    s_mov_b32 s91, 0x00020000
    s_lshl_b32 s100, s2, 3
    s_add_u32 s100, s100, s30
    s_lshl_b32 s100, s100, 7
    s_add_u32 s100, s100, {STAMP + kid * 262144 + slot * 16}
    s_waitcnt lgkmcnt(0)
    v_mov_b32 v252, s92
    v_mov_b32 v253, s96
    v_mov_b32 v254, s94
    v_mov_b32 v255, s98
    v_mov_b32 v251, 0
    buffer_store_dwordx4 v[252:255], v251, s[88:91], s100 offen
    s_nop 1
    """)


def mfma(d, x, y, c=None):
    cs = "0" if c is None else vr(c, 16)
    return f"v_mfma_f32_32x32x16_bf16 {vr(d,16)}, {vr(x,4)}, {vr(y,4)}, {cs}"


def k1(a, opt):
    k = "qkv_kernel"
    header(a, k)
    SLOT = 40960
    stamp0(a, opt)
    ST = opt.get("k1_store", "")
    a(f"""
    s_cmp_ge_u32 s2, 256
    s_cbranch_scc1 K1_end
    s_load_dwordx4 s[4:7], s[0:1], 0          ; x, A_wqkv
    s_load_dwordx2 s[8:9], s[0:1], 32         ; B_wqkv
    s_load_dwordx2 s[10:11], s[0:1], 48       ; gate_w
    s_load_dwordx2 s[12:13], s[0:1], 72       ; ws
    v_lshrrev_b32 v1, 6, v0
    v_and_b32 v2, 63, v0                      ; lane
    s_and_b32 s28, s2, 7
    s_lshr_b32 s29, s2, 3
    v_readfirstlane_b32 s30, v1               ; wave
    s_cmp_ge_u32 s29, 28
    s_cbranch_scc1 K1_aux
    s_mul_i32 s31, s29, 9363
    s_lshr_b32 s31, s31, 16                   ; r/7
    s_mul_i32 s32, s31, 7
    s_sub_u32 s32, s29, s32                   ; cb7
    s_and_b32 s33, s28, 1                     ; branch
    s_lshr_b32 s34, s28, 1
    s_lshl_b32 s34, s34, 2
    s_add_u32 s34, s34, s31
    s_lshl_b32 s35, s34, 1
    s_add_u32 s35, s35, s32
    s_mul_i32 s36, s35, 9363
    s_lshr_b32 s36, s36, 16
    s_mul_i32 s36, s36, 7
    s_sub_u32 s35, s35, s36
    v_lshrrev_b32 v3, 3, v2                   ; l/8
    v_and_b32 v4, 7, v2
    v_lshrrev_b32 v5, 4, v2                   ; l/16
    v_xor_b32 v6, v4, v5
    s_lshl_b32 s36, s34, 7
    s_lshl_b32 s37, s30, 4
    s_add_u32 s36, s36, s37
    v_add_u32 v7, s36, v3
    v_mul_u32_u24 v7, 896, v7
    v_lshl_add_u32 v8, v6, 4, v7              ; xa
    v_xor_b32 v6, 4, v6
    v_lshl_add_u32 v9, v6, 4, v7
    v_add_u32 v9, 7168, v9                    ; xb
    v_and_b32 v5, 1, v5
    v_lshlrev_b32 v5, 2, v5
    v_xor_b32 v5, v4, v5
    s_lshl_b32 s37, s30, 3
    v_add_u32 v7, s37, v3
    v_mul_u32_u24 v7, 2688, v7
    v_lshl_add_u32 v10, v5, 4, v7             ; w
    s_mul_i32 s38, s32, 384
    s_lshl_b32 s39, s30, 11
    s_lshl_b32 s40, s30, 10
    s_add_u32 s40, s40, 16384
    s_waitcnt lgkmcnt(0)
    """)
    srd(a, 16, 4, 1835008)
    a("""
    s_cmp_eq_u32 s33, 0
    s_cselect_b32 s20, s6, s8
    s_cselect_b32 s21, s7, s9
    s_mov_b32 s22, 1204224
    s_mov_b32 s23, 0x00020000
    """)
    srd(a, 24, 12, WS_BYTES)

    def dma(slot):
        a(f"""
        s_lshl_b32 s42, s35, 7
        s_mul_i32 s43, s35, 172032
        s_add_u32 m0, s39, {slot}
        s_add_u32 s43, s43, s38
        buffer_load_dwordx4 v8, s[16:19], s42 offen lds
        s_add_u32 m0, m0, 1024
        s_add_u32 s35, s35, 1
        buffer_load_dwordx4 v9, s[16:19], s42 offen lds
        s_add_u32 m0, s40, {slot}
        s_add_u32 s44, s43, 128
        buffer_load_dwordx4 v10, s[20:23], s43 offen lds
        s_add_u32 m0, m0, 8192
        s_add_u32 s45, s43, 256
        buffer_load_dwordx4 v10, s[20:23], s44 offen lds
        s_add_u32 m0, m0, 8192
        s_cmp_eq_u32 s35, 7
        buffer_load_dwordx4 v10, s[20:23], s45 offen lds
        s_cselect_b32 s35, 0, s35
        """)
    a("s_mov_b32 s41, 0")
    a("K1_pro:")
    dma("s41")
    a(f"""
    s_add_u32 s41, s41, {SLOT}
    s_cmp_lt_u32 s41, {4*SLOT}
    s_cbranch_scc1 K1_pro
    """)
    XR, WR, XF, WF, ACC = 12, 16, 20, 36, 84
    a(f"""
    v_and_b32 v3, 31, v2                      ; n
    v_lshrrev_b32 v4, 5, v2                   ; hf
    s_and_b32 s46, s30, 3
    s_lshr_b32 s47, s30, 2
    v_lshrrev_b32 v5, 1, v3
    v_and_b32 v5, 7, v5
    v_xor_b32 v5, v4, v5
    s_lshl_b32 s48, s46, 12
    v_lshlrev_b32 v6, 7, v3
    v_lshl_add_u32 v6, v5, 4, v6
    v_add_u32 v{XR}, s48, v6
    v_xor_b32 v{XR+1}, 32, v{XR}
    v_xor_b32 v{XR+2}, 64, v{XR}
    v_xor_b32 v{XR+3}, 96, v{XR}
    v_bfe_u32 v5, v2, 2, 2                    ; r
    v_lshl_add_u32 v6, v4, 3, v5              ; 8hf + r
    v_lshlrev_b32 v6, 7, v6
    v_and_b32 v7, 3, v2
    v_lshl_add_u32 v6, v7, 3, v6
    v_bfe_u32 v7, v2, 4, 1
    v_lshl_add_u32 v6, v7, 5, v6
    v_bfe_u32 v7, v2, 3, 1                    ; r>>1
    v_lshl_add_u32 v6, v7, 6, v6              ; (half0 ^ r>>1)*64
    v_add_u32 v6, 16384, v6
    s_mul_i32 s48, s47, 3
    """)
    for i in range(3):
        a(f"""
        s_add_u32 s49, s48, {i}
        s_lshr_b32 s50, s49, 1
        s_lshl_b32 s50, s50, 13
        s_and_b32 s49, s49, 1
        s_lshl_b32 s49, s49, 6
        v_xor_b32 v{WR+i}, s49, v6
        v_add_u32 v{WR+i}, s50, v{WR+i}
        """)
    for i in range(48):
        a(f"v_mov_b32 v{ACC+i}, 0")
    a(f"""
    s_mul_i32 s51, s32, 6
    s_add_u32 s51, s51, s48
    s_mov_b32 s52, 0                          ; iteration
    s_waitcnt vmcnt(15)
    s_cmp_ge_u32 s51, 28
    s_cbranch_scc1 K1_C_in
    s_cmp_eq_u32 s51, 27
    s_cbranch_scc1 K1_B_in
    s_branch K1_A_in
    """)

    def reads(st):
        a(f"ds_read_b128 {vr(XF+4*st,4)}, v{XR+st}")
        for i in range(3):
            b = WF + (st * 3 + i) * 4
            a(f"ds_read_b64_tr_b16 {vr(b,2)}, v{WR+i} offset:{st*2048}")
            a(f"ds_read_b64_tr_b16 {vr(b+2,2)}, v{WR+i} offset:{st*2048+512}")

    def mm(st, types):
        for i in range(3):
            w = WF + (st * 3 + i) * 4
            x = XF + 4 * st
            if types[i] == "q":
                a(mfma(ACC + 16 * i, w, x, ACC + 16 * i))
            else:
                a(mfma(ACC + 16 * i, x, w, ACC + 16 * i))

    def epi_qk(i):
        c = ACC + 16 * i
        a(f"""
        s_add_u32 s53, s51, {i}
        s_cmp_ge_u32 s53, 14
        s_cselect_b32 s54, 14, 0
        s_cselect_b32 s55, 1.0, s60
        s_cselect_b32 s56, s62, s61
        s_cselect_b32 s57, s64, s63
        s_sub_u32 s53, s53, s54
        s_lshl_b32 s53, s53, 3
        """)
        for r in range(16):
            a(f"v_mul_f32 v{c+r}, s55, v{c+r}")
        for r in range(8):
            a(f"v_cvt_pk_bf16_f32 v{c+r}, v{c+2*r}, v{c+2*r+1}")
        for q in range(4):
            t = 20 + 2 * q
            a(f"""
            v_add_u32 v{t}, s53, v4
            s_add_u32 s53, s53, 2
            v_mul_u32_u24 v{t+1}, 9363, v{t}
            v_lshrrev_b32 v{t+1}, 16, v{t+1}
            v_mad_u32_u24 v{t+1}, v{t+1}, s56, v5
            v_lshl_add_u32 v{t+1}, v{t}, 8, v{t+1}
            buffer_store_dwordx2 {vr(c+2*q,2)}, v{t+1}, s[24:27], s57 offen {ST}
            """)

    def epi_v(i):
        c = ACC + 16 * i
        t = 28 + 2 * i
        a(f"""
        s_add_u32 s53, s51, {i-28}
        s_lshl_b32 s53, s53, 5
        v_add_u32 v{t}, s53, v3
        v_mul_u32_u24 v{t+1}, 2341, v{t}
        v_lshrrev_b32 v{t+1}, 16, v{t+1}
        v_mad_u32_u24 v{t+1}, v{t+1}, s65, v6
        v_lshl_add_u32 v{t+1}, v{t}, 4, v{t+1}
        """)
        for r in range(8):
            a(f"v_cvt_pk_bf16_f32 v{c+r}, v{c+2*r}, v{c+2*r+1}")
        a(f"buffer_store_dwordx4 {vr(c,4)}, v{t+1}, s[24:27], s64 offen offset:2048 {ST}")
        a(f"buffer_store_dwordx4 {vr(c+4,4)}, v{t+1}, s[24:27], s64 offen offset:3072 {ST}")

    for var, types in (("A", "qqq"), ("B", "qvv"), ("C", "vvv")):
        a(f"""
        K1_{var}_loop:
        s_cmp_lt_u32 s52, 5
        s_cbranch_scc1 K1_{var}_w10
        s_cmp_eq_u32 s52, 5
        s_cbranch_scc1 K1_{var}_w5
        s_waitcnt vmcnt(0)
        K1_{var}_w5:
        s_waitcnt vmcnt(5)
        K1_{var}_w10:
        s_waitcnt vmcnt(10)
        K1_{var}_in:
        s_barrier
        """)
        reads(0)
        reads(1)
        a(f"""
        s_sub_u32 s41, s52, 1
        s_cmp_ge_u32 s41, 3
        s_cbranch_scc1 K1_{var}_nodma
        s_mul_i32 s41, s41, {SLOT}
        """)
        dma("s41")
        a(f"K1_{var}_nodma:")
        a("s_waitcnt lgkmcnt(7)")
        mm(0, types)
        reads(2)
        a("s_waitcnt lgkmcnt(7)")
        mm(1, types)
        reads(3)
        a(f"""
        s_movk_i32 s41, {SLOT >> 2}
        s_cmp_eq_u32 s52, 3
        s_cselect_b32 s41, {(-3*SLOT >> 2) & 0xffffffff}, s41
        s_lshl_b32 s41, s41, 2
        """)
        a("s_waitcnt lgkmcnt(7)")
        mm(2, types)
        for r in list(range(XR, XR + 4)) + list(range(WR, WR + 3)):
            a(f"v_add_u32 v{r}, s41, v{r}")
        a("s_waitcnt lgkmcnt(0)")
        mm(3, types)
        a(f"""
        s_add_u32 s52, s52, 1
        s_cmp_lt_u32 s52, 7
        s_cbranch_scc1 K1_{var}_loop
        """)
        stamp(a, opt, 0, 0)
        a(f"""
        s_lshl_b32 s58, s33, 10
        s_lshl_b32 s59, s34, 2
        s_add_u32 s58, s58, s59
        s_add_u32 s58, s58, s46
        s_mov_b32 s60, {f32(math.log2(math.e) / math.sqrt(28.0))}
        s_mov_b32 s61, {64*2048-1792}
        s_mov_b32 s62, {64*4096-1792}
        s_lshl_b32 s63, s58, 11
        s_lshl_b32 s64, s58, 12
        s_add_u32 s64, s64, {KVF}
        s_mov_b32 s65, {64*4096-448}
        v_lshlrev_b32 v5, 3, v3
        v_lshlrev_b32 v6, 9, v4
        s_nop 7
        """)
        for i in range(3):
            (epi_qk if types[i] == "q" else epi_v)(i)
        stamp(a, opt, 0, 1)
        if opt.get("stamp"):
            a("s_waitcnt vmcnt(0)")
        stamp(a, opt, 0, 2)
        a("s_endpgm")

    a(f"""
    K1_aux:
    s_sub_u32 s29, s29, 28
    s_lshl_b32 s28, s28, 2
    s_add_u32 s28, s28, s29                   ; u = 0..31
    v_lshrrev_b32 v3, 3, v2
    v_and_b32 v4, 7, v2
    s_lshl_b32 s31, s28, 6
    s_lshl_b32 s32, s30, 3
    s_add_u32 s31, s31, s32
    v_add_u32 v5, s31, v3                     ; token
    v_mul_u32_u24 v6, 896, v5
    v_lshl_add_u32 v6, v4, 4, v6
    v_lshlrev_b32 v7, 4, v4
    s_waitcnt lgkmcnt(0)
    """)
    srd(a, 16, 4, 1835008)
    srd(a, 20, 10, 896)
    srd(a, 24, 12, WS_BYTES)
    for i in range(7):
        a(f"buffer_load_dwordx4 {vr(16+4*i,4)}, v6, s[16:19], 0 offen offset:{128*i}")
        a(f"buffer_load_dwordx4 {vr(48+4*i,4)}, v7, s[20:23], 0 offen offset:{128*i}")
    a(f"""
    v_lshrrev_b32 v8, 4, v2
    v_and_b32 v9, 15, v2
    s_lshl_b32 s33, s28, 6
    s_add_u32 s33, s33, s32                   ; hb*64 + w*8
    v_add_u32 v8, s33, v8
    v_lshlrev_b32 v10, 11, v8
    v_lshl_add_u32 v10, v9, 4, v10            ; Q pad
    v_lshlrev_b32 v11, 12, v8
    v_lshrrev_b32 v13, 2, v9
    v_and_b32 v14, 3, v9
    v_lshl_add_u32 v12, v13, 9, v11
    v_lshl_add_u32 v12, v14, 4, v12           ; V pad
    v_lshl_add_u32 v11, v9, 4, v11            ; K pad
    v_mov_b32 v80, 0
    v_mov_b32 v81, 0
    v_mov_b32 v82, 0
    v_mov_b32 v83, 0
    v_mov_b32 v84, 0x3f803f80
    v_mov_b32 v85, 0x3f803f80
    v_mov_b32 v86, 0x3f803f80
    v_mov_b32 v87, 0x3f803f80
    s_mov_b32 s34, {4*2048}
    s_mov_b32 s35, {KVF}
    s_mov_b32 s36, {KVF+4*4096}
    buffer_store_dwordx4 v[80:83], v10, s[24:27], 0 offen offset:1792 {ST}
    buffer_store_dwordx4 v[80:83], v10, s[24:27], s34 offen offset:1792 {ST}
    buffer_store_dwordx4 v[80:83], v11, s[24:27], s35 offen offset:1792 {ST}
    buffer_store_dwordx4 v[80:83], v11, s[24:27], s36 offen offset:1792 {ST}
    buffer_store_dwordx4 v[84:87], v12, s[24:27], s35 offen offset:{2048+448} {ST}
    buffer_store_dwordx4 v[84:87], v12, s[24:27], s36 offen offset:{2048+448} {ST}
    v_mov_b32 v13, 0
    s_waitcnt vmcnt(6)
    """)
    for i in range(28):
        a(f"""
        v_and_b32 v14, 0xffff0000, v{16+i}
        v_and_b32 v15, 0xffff0000, v{48+i}
        v_fmac_f32 v13, v14, v15
        v_lshlrev_b32 v14, 16, v{16+i}
        v_lshlrev_b32 v15, 16, v{48+i}
        v_fmac_f32 v13, v14, v15
        """)
    a(f"""
    s_nop 1
    v_add_f32_dpp v13, v13, v13 quad_perm:[1,0,3,2] row_mask:0xf bank_mask:0xf
    s_nop 1
    v_add_f32_dpp v13, v13, v13 quad_perm:[2,3,0,1] row_mask:0xf bank_mask:0xf
    s_nop 1
    v_add_f32_dpp v13, v13, v13 row_half_mirror row_mask:0xf bank_mask:0xf
    v_mul_f32 v13, {f32(-math.log2(math.e))}, v13
    v_exp_f32 v13, v13
    s_nop 0
    v_add_f32 v13, 1.0, v13
    v_rcp_f32 v13, v13
    v_lshlrev_b32 v5, 2, v5
    s_mov_b32 s34, {GOFF}
    v_cmp_eq_u32 vcc, 0, v4
    s_and_saveexec_b64 s[36:37], vcc
    buffer_store_dword v13, v5, s[24:27], s34 offen {ST}
    K1_end:
    s_endpgm
    """)
    return k, 132


def k2(a, opt):
    k = "attn_kernel"
    header(a, k)
    ST = opt.get("k2_store", "")
    O, S, Q, K, V = 16, 80, 144, 176, 208
    IDX, VQ, VK, VV, VG = 4, 5, 6, 7, 8
    stamp0(a, opt)
    a(f"""
    s_cmp_ge_u32 s2, 256
    s_cbranch_scc1 K2_end
    s_load_dwordx2 s[12:13], s[0:1], 72       ; ws
    v_lshrrev_b32 v1, 6, v0
    v_and_b32 v2, 63, v0                      ; lane
    s_and_b32 s28, s2, 7
    s_lshr_b32 s29, s2, 3
    v_readfirstlane_b32 s30, v1               ; wave
    s_lshl_b32 s28, s28, 2
    s_and_b32 s31, s29, 3
    s_add_u32 s31, s31, s28                   ; hb
    s_lshr_b32 s32, s29, 2
    s_and_b32 s33, s30, 3
    s_lshr_b32 s34, s30, 2
    v_lshlrev_b32 v{VQ}, 3, v2                ; lane*8
    v_and_b32 v3, 0x33, v2
    v_and_b32 v9, 4, v2
    v_lshl_or_b32 v3, v9, 1, v3
    v_and_b32 v9, 8, v2
    v_lshrrev_b32 v9, 1, v9
    v_or_b32 v3, v3, v9
    v_lshlrev_b32 v{VK}, 3, v3
    v_lshlrev_b32 v{VV}, 4, v2
    s_lshl_b32 s35, s32, 3
    s_lshl_b32 s36, s34, 2
    s_add_u32 s35, s35, s36
    s_lshl_b32 s36, s31, 6                    ; hb*64
    s_lshl_b32 s37, s33, 4
    s_add_u32 s37, s37, s36
    s_lshl_b32 s37, s37, 12
    s_add_u32 s37, s37, {KVF}
    s_lshl_b32 s38, s32, 1
    s_mov_b32 s39, s38                        ; for V
    s_add_u32 s36, s36, s35
    s_waitcnt lgkmcnt(0)
    """)
    srd(a, 24, 12, WS_BYTES)

    def loadK(u):
        a(f"""
        s_and_b32 s40, s38, 15
        s_lshl_b32 s40, s40, 12
        s_add_u32 s40, s40, s37
        s_add_u32 s38, s38, 1
        """)
        for i in range(4):
            a(f"buffer_load_dwordx2 {vr(K+8*u+2*i,2)}, v{VK}, s[24:27], s40 offen offset:{512*i}")

    def loadV(u):
        a(f"""
        s_and_b32 s41, s39, 15
        s_lshl_b32 s41, s41, 12
        s_add_u32 s41, s41, s37
        s_add_u32 s39, s39, 1
        """)
        for i in range(2):
            a(f"buffer_load_dwordx4 {vr(V+8*u+4*i,4)}, v{VV}, s[24:27], s41 offen offset:{2048+1024*i}")

    def loadQ(j):
        a(f"""
        s_add_u32 s42, s33, {j}
        s_and_b32 s42, s42, 3
        s_add_u32 s42, s42, s36
        s_lshl_b32 s42, s42, 11
        """)
        for i in range(4):
            a(f"buffer_load_dwordx2 {vr(Q+8*j+2*i,2)}, v{VQ}, s[24:27], s42 offen offset:{512*i}")

    loadK(0)
    loadQ(0)
    loadQ(1)
    loadV(0)
    loadQ(2)
    loadQ(3)
    a(f"""
    v_and_b32 v9, 31, v2
    s_add_u32 s43, s35, s33
    s_lshl_b32 s42, s43, 7
    s_add_u32 s42, s42, {GOFF}
    v_lshlrev_b32 v9, 2, v9
    buffer_load_dword v{VG}, v9, s[24:27], s42 offen
    """)
    loadK(1); loadV(1); loadK(2); loadV(2); loadK(3)
    a(f"v_mov_b32 v{IDX}, 0xdddddddd")
    for i in range(64):
        a(f"v_mov_b32 v{O+i}, 0")
    for i in range(16):
        a(f"v_mov_b32 v{S+48+i}, 0")
    for i in range(8):
        a(f"v_mov_b32 v{V+24+i}, 0")
    a("s_mov_b32 s44, 0")
    a("s_mov_b32 s45, 4")
    a("s_waitcnt vmcnt(31)")
    a(mfma(S, K, Q))
    a(mfma(S, K + 4, Q + 4, S))
    a("s_waitcnt vmcnt(16)")
    a("s_nop 10")

    def smf(o, v, s):
        return f"v_smfmac_f32_32x32x32_bf16 {vr(o,16)}, {vr(v,4)}, {vr(s,8)}, v{IDX}"

    def ex(j, r0):
        for r in range(r0, r0 + 4):
            a(f"v_exp_f32 v{S+16*j+r}, v{S+16*j+r}")

    if opt.get("stamp"):
        a("s_memrealtime s[84:85]")
        a("s_memtime s[86:87]")
    a(".p2align 6")
    a("K2_loop:")
    for u in range(4):
        for j in range(4):
            nj = (j + 1) % 4
            ku = u if j < 3 else (u + 1) % 4
            pj = (j - 1) % 4
            vu = u if j > 0 else (u - 1) % 4
            if j == 3:
                a("s_waitcnt vmcnt(12)")
            a(mfma(S + 16 * nj, K + 8 * ku, Q + 8 * nj))
            ex(j, 0)
            a(mfma(S + 16 * nj, K + 8 * ku + 4, Q + 8 * nj + 4, S + 16 * nj))
            ex(j, 4)
            a(smf(O + 16 * pj, V + 8 * vu, S + 16 * pj))
            if j == 1:
                loadV((u - 1) % 4)
            if j == 3:
                loadK(u)
            ex(j, 8)
            a(smf(O + 16 * pj, V + 8 * vu + 4, S + 16 * pj + 8))
            ex(j, 12)
    a("""
    s_sub_u32 s45, s45, 1
    s_cmp_lg_u32 s45, 0
    s_cbranch_scc1 K2_loop
    s_nop 1
    """)
    a(smf(O + 48, V + 24, S + 48))
    a(smf(O + 48, V + 28, S + 56))
    stamp(a, opt, 1, 0)
    if opt.get("stamp"):
        a("s_mov_b32 s92, s84")
        a("s_mov_b32 s94, s86")
    stamp(a, opt, 1, 1)
    a("K2_reduce:")
    a(f"""
    s_lshl_b32 s46, s34, 2                    ; qh*4
    """)
    for j in (1, 2, 3):
        a(f"""
        s_add_u32 s47, s33, {j}
        s_and_b32 s47, s47, 3
        s_add_u32 s47, s47, s46
        s_mul_i32 s47, s47, 12288
        v_add_u32 v{9+j}, s47, v{VV}
        """)
    a("s_mul_i32 s47, s30, 12288")
    a(f"v_add_u32 v9, s47, v{VV}")
    a("s_nop 4")
    for j in (1, 2, 3):
        if j == 3:
            a("s_nop 7")
        for r in range(4):
            a(f"ds_write_b128 v{9+j}, {vr(O+16*j+4*r,4)} offset:{(j-1)*4096+r*1024}")
    a("v_mov_b32 v13, 0")
    a("v_mov_b32 v14, 98304")
    a("ds_write_b32 v14, v13")
    a("s_waitcnt lgkmcnt(0)")
    a("s_barrier")
    for j in (1, 2, 3):
        for r in range(4):
            a(f"ds_read_b128 {vr(O+16*j+4*r,4)}, v9 offset:{(j-1)*4096+r*1024}")
    a(f"""
    s_cmp_ge_u32 s31, 16
    s_cselect_b32 s48, -1.0, 1.0
    s_cselect_b32 s49, 1.0, 0
    s_waitcnt vmcnt(0)
    v_mov_b32 v10, s49
    v_fma_f32 v10, v{VG}, s48, v10            ; g or 1-g
    """)
    for j in (1, 2, 3):
        a(f"s_waitcnt lgkmcnt({8-4*j+4 if j < 3 else 0})")
        for r in range(16):
            a(f"v_add_f32 v{O+r}, v{O+r}, v{O+16*j+r}")
    a(f"""
    v_mov_b32 v11, v{O+12}
    v_mov_b32 v12, v{O+12}
    v_mov_b32 v13, 0
    s_nop 0
    v_permlane32_swap_b32 v11, v12
    """)
    for r in range(16):
        a(f"v_fma_f32 v13, v{O+r}, 0, v13")
    a(f"""
    v_cmp_gt_u32 vcc, 32, v2
    v_rcp_f32 v11, v12
    v_add_f32 v13, v13, v12
    v_mul_f32 v11, v11, v10
    v_cndmask_b32 v15, 0, v11, vcc
    """)
    for r in range(12):
        a(f"v_mul_f32 v{O+r}, v{O+r}, v11")
    for r in range(12, 16):
        a(f"v_mul_f32 v{O+r}, v{O+r}, v15")
    for r in range(8):
        a(f"v_cvt_pk_bf16_f32 v{O+r}, v{O+2*r}, v{O+2*r+1}")
    a(f"""
    s_lshl_b32 s47, s43, 5
    s_add_u32 s47, s47, s31
    s_lshl_b32 s47, s47, 11
    s_add_u32 s47, s47, {OF}
    buffer_store_dwordx4 {vr(O,4)}, v{VV}, s[24:27], s47 offen {ST}
    buffer_store_dwordx4 {vr(O+4,4)}, v{VV}, s[24:27], s47 offen offset:1024 {ST}
    s_cmp_lg_u32 s44, 0
    s_cbranch_scc1 K2_end
    ; unshifted softmax is only kept when the row sums are comfortably inside the f32 range
    v_cmp_nle_f32 vcc, {f32(2.0**-60)}, v13
    v_cmp_nge_f32 s[48:49], {f32(2.0**60)}, v13
    """.replace(f"v_cmp_nge_f32 s[48:49], {f32(2.0**60)}, v13", f"v_mov_b32 v11, {f32(2.0**60)}\n v_cmp_nge_f32 s[48:49], v11, v13"))
    a(f"""
    s_or_b64 vcc, vcc, s[48:49]
    s_cbranch_vccz K2_ok
    v_mov_b32 v13, 1
    ds_write_b32 v14, v13
    K2_ok:
    s_waitcnt lgkmcnt(0)
    s_barrier
    ds_read_b32 v13, v14
    s_waitcnt lgkmcnt(0)
    """)
    stamp(a, opt, 1, 2)
    a(f"""
    v_readfirstlane_b32 s47, v13
    s_cmp_eq_u32 s47, 0
    s_cbranch_scc1 K2_end
    """)
    M = 240
    a("s_waitcnt vmcnt(0)")
    a("s_mov_b32 s44, 1")
    for j in range(4):
        a(f"v_mov_b32 v{M+j}, 0xff800000")
    a("s_mov_b32 s45, 16")
    a("K2_f1:")
    loadK(0)
    a("s_waitcnt vmcnt(0)")
    for j in range(4):
        a(mfma(S + 16 * j, K, Q + 8 * j))
        a(mfma(S + 16 * j, K + 4, Q + 8 * j + 4, S + 16 * j))
    a("s_nop 15")
    for j in range(4):
        for r in range(0, 16, 2):
            a(f"v_max3_f32 v{M+j}, v{M+j}, v{S+16*j+r}, v{S+16*j+r+1}")
    a("""
    s_sub_u32 s45, s45, 1
    s_cmp_lg_u32 s45, 0
    s_cbranch_scc1 K2_f1
    """)
    a("v_lshlrev_b32 v9, 2, v2")
    for j in range(4):
        a(f"""
        s_add_u32 s47, s33, {j}
        s_and_b32 s47, s47, 3
        s_add_u32 s47, s47, s46
        s_lshl_b32 s47, s47, 10
        v_add_u32 v{10+j}, s47, v9
        """)
    a("s_lshl_b32 s47, s33, 8")
    a("s_barrier")
    for j in range(4):
        a(f"v_add_u32 v9, s47, v{10+j}")
        a(f"ds_write_b32 v9, v{M+j}")
    a("s_waitcnt lgkmcnt(0)")
    a("s_barrier")
    for j in range(4):
        for q in range(4):
            a(f"ds_read_b32 v{S+4*j+q}, v{10+j} offset:{256*q}")
    a("s_waitcnt lgkmcnt(0)")
    for j in range(4):
        a(f"""
        v_max3_f32 v{M+j}, v{S+4*j}, v{S+4*j+1}, v{S+4*j+2}
        v_max_f32 v{M+j}, v{M+j}, v{S+4*j+3}
        v_mov_b32 v9, v{M+j}
        s_nop 1
        v_permlane32_swap_b32 v9, v{M+j}
        s_nop 1
        v_max_f32 v{M+j}, v{M+j}, v9
        """)
    for i in range(64):
        a(f"v_mov_b32 v{O+i}, 0")
    a("s_mov_b32 s45, 16")
    a("s_mov_b32 s39, s38")
    a("s_barrier")
    a("K2_f2:")
    loadK(0)
    loadV(0)
    a("s_waitcnt vmcnt(0)")
    for j in range(4):
        a(mfma(S + 16 * j, K, Q + 8 * j))
        a(mfma(S + 16 * j, K + 4, Q + 8 * j + 4, S + 16 * j))
    a("s_nop 15")
    for j in range(4):
        for r in range(16):
            a(f"v_sub_f32 v{S+16*j+r}, v{S+16*j+r}, v{M+j}")
        for r in range(16):
            a(f"v_exp_f32 v{S+16*j+r}, v{S+16*j+r}")
    a("s_nop 3")
    for j in range(4):
        a(smf(O + 16 * j, V, S + 16 * j))
        a(smf(O + 16 * j, V + 4, S + 16 * j + 8))
    a("""
    s_nop 15
    s_sub_u32 s45, s45, 1
    s_cmp_lg_u32 s45, 0
    s_cbranch_scc1 K2_f2
    s_branch K2_reduce
    K2_end:
    s_endpgm
    """)
    return k, 244


def k3(a, opt):
    k = "proj_kernel"
    header(a, k)
    OFR, WFR, ACC = 16, 80, 112
    stamp0(a, opt)
    a(f"""
    s_cmp_ge_u32 s2, 224
    s_cbranch_scc1 K3_end
    s_load_dwordx2 s[4:5], s[0:1], 16         ; A_wo
    s_load_dwordx2 s[6:7], s[0:1], 40         ; B_wo
    s_load_dwordx2 s[8:9], s[0:1], 56         ; out
    s_load_dwordx2 s[12:13], s[0:1], 72       ; ws
    v_lshrrev_b32 v1, 6, v0
    v_and_b32 v2, 63, v0
    s_and_b32 s28, s2, 7
    s_lshr_b32 s29, s2, 3
    v_readfirstlane_b32 s30, v1               ; wave
    s_mul_i32 s31, s29, 9363
    s_lshr_b32 s31, s31, 16
    s_mul_i32 s32, s31, 7
    s_sub_u32 s32, s29, s32
    s_lshl_b32 s28, s28, 2
    s_add_u32 s31, s31, s28
    s_and_b32 s33, s30, 3                     ; k quarter
    s_lshr_b32 s34, s30, 2
    v_lshlrev_b32 v3, 4, v2
    v_lshrrev_b32 v4, 3, v2
    v_and_b32 v5, 7, v2
    v_bfe_u32 v6, v2, 4, 1
    v_lshlrev_b32 v6, 2, v6
    v_xor_b32 v5, v5, v6
    v_mul_u32_u24 v4, 896, v4
    v_lshl_add_u32 v4, v5, 4, v4
    s_mul_i32 s35, s33, {112*896}
    s_lshl_b32 s36, s32, 7
    s_add_u32 s35, s35, s36
    s_mul_i32 s36, s30, {112*128}
    s_lshl_b32 s37, s31, 1
    s_add_u32 s37, s37, s34
    s_lshl_b32 s37, s37, 5
    s_lshl_b32 s38, s33, 3
    s_add_u32 s37, s37, s38
    s_lshl_b32 s37, s37, 11
    s_add_u32 s37, s37, {OF}
    s_waitcnt lgkmcnt(0)
    s_cmp_eq_u32 s34, 0
    s_cselect_b32 s16, s4, s6
    s_cselect_b32 s17, s5, s7
    s_mov_b32 s18, {448*896}
    s_mov_b32 s19, 0x00020000
    """)
    srd(a, 20, 8, 2048 * 896)
    srd(a, 24, 12, WS_BYTES)
    a("s_mov_b32 m0, s36")
    a("s_nop 0")
    for i in range(14):
        a(f"buffer_load_dwordx4 v4, s[16:19], s35 offen lds")
        if i < 13:
            a("s_add_u32 m0, m0, 1024")
            a(f"s_add_u32 s35, s35, {8*896}")
    for i in range(16):
        if i % 4 == 0 and i:
            a("s_add_u32 s37, s37, 4096")
        a(f"buffer_load_dwordx4 {vr(OFR+4*i,4)}, v3, s[24:27], s37 offen offset:{(i%4)*1024}")
    a(f"""
    v_mov_b32 v8, 0
    v_mov_b32 v9, 0
    v_lshlrev_b32 v7, 3, v2
    ds_write_b64 v7, v[8:9] offset:0
    """.replace("ds_write_b64 v7, v[8:9] offset:0", f"v_add_u32 v7, {896*128}, v7\n ds_write_b64 v7, v[8:9]"))
    a(f"""
    v_lshrrev_b32 v5, 5, v2                   ; hf
    v_bfe_u32 v6, v2, 2, 2                    ; r
    v_lshl_add_u32 v6, v5, 2, v6
    v_lshlrev_b32 v6, 7, v6
    v_and_b32 v7, 3, v2
    v_lshl_add_u32 v6, v7, 3, v6
    v_bfe_u32 v7, v2, 4, 1
    v_lshl_add_u32 v6, v7, 5, v6
    v_bfe_u32 v7, v2, 3, 1
    v_lshl_add_u32 v6, v7, 6, v6
    s_mul_i32 s38, s33, {224*128}
    v_add_u32 v10, s38, v6
    v_xor_b32 v11, 64, v10
    s_waitcnt vmcnt(16) lgkmcnt(0)
    s_barrier
    """)

    def reads(i):
        off = (28 * (i // 2) + 16 * (i % 2)) * 128
        b = WFR + (i % 4) * 8
        for ct in range(2):
            a(f"ds_read_b64_tr_b16 {vr(b+4*ct,2)}, v{10+ct} offset:{off}")
            a(f"ds_read_b64_tr_b16 {vr(b+4*ct+2,2)}, v{10+ct} offset:{off+1024}")
    reads(0); reads(1); reads(2)
    for i in range(16):
        if i + 3 < 16:
            reads(i + 3)
        rem = min(3, 15 - i)
        a(f"s_waitcnt vmcnt({15-i}) lgkmcnt({4*rem})")
        b = WFR + (i % 4) * 8
        for ct in range(2):
            a(mfma(ACC + 16 * ct, b + 4 * ct, OFR + 4 * i, None if i == 0 else ACC + 16 * ct))
    stamp(a, opt, 2, 0)
    RS = 272
    a(f"""
    v_and_b32 v6, 31, v2
    s_lshl_b32 s38, s33, 6
    s_lshl_b32 s39, s34, 5
    s_add_u32 s38, s38, s39
    v_add_u32 v6, s38, v6
    v_mul_u32_u24 v6, {RS}, v6
    v_lshl_add_u32 v6, v5, 4, v6
    v_lshrrev_b32 v7, 3, v0
    v_and_b32 v8, 7, v0
    v_mul_u32_u24 v9, {RS}, v7
    v_lshl_add_u32 v9, v8, 5, v9
    s_lshl_b32 s38, s31, 6
    v_add_u32 v7, s38, v7
    v_mul_u32_u24 v7, 896, v7
    v_lshl_add_u32 v7, v8, 4, v7
    s_lshl_b32 s38, s32, 7
    s_barrier
    s_nop 4
    """)
    for ct in range(2):
        for q in range(4):
            a(f"ds_write_b128 v6, {vr(ACC+16*ct+4*q,4)} offset:{ct*128+q*32}")
    a("s_waitcnt lgkmcnt(0)")
    a("s_barrier")
    for q in range(4):
        for h in range(2):
            a(f"ds_read_b128 {vr(16+8*q+4*h,4)}, v9 offset:{q*64*RS+16*h}")
    for q in range(1, 4):
        a(f"s_waitcnt lgkmcnt({6-2*q})")
        for r in range(8):
            a(f"v_add_f32 v{16+r}, v{16+r}, v{16+8*q+r}")
    for r in range(4):
        a(f"v_cvt_pk_bf16_f32 v{16+r}, v{16+2*r}, v{16+2*r+1}")
    a("""
    buffer_store_dwordx4 v[16:19], v7, s[20:23], s38 offen
    """)
    stamp(a, opt, 2, 1)
    a("""
    K3_end:
    s_endpgm
    """)
    return k, 144


def gen(opt):
    a = A()
    launches = [("qkv_kernel", 256, 163840), ("attn_kernel", 256, 98432), ("proj_kernel", 224, 115712)]
    head = "; generated by gen.py (hand-written generator)\n"
    for kn, g, lds in launches:
        head += f"; @launch kernel={kn} grid=({g},1,1) block=(512,1,1) lds={lds}\n"
    a('.amdgcn_target "amdgcn-amd-amdhsa--gfx950"')
    a(".text")
    ks = [k1(a, opt), k2(a, opt), k3(a, opt)]
    out = head + a.text() + '.section .rodata,"a"\n'
    for kn, nv in ks:
        out += ".p2align 6\n" + desc(kn, 256 if opt.get("stamp") else nv)
    return out


if __name__ == "__main__":
    opt = dict(x.split("=", 1) for x in sys.argv[2:])
    path = sys.argv[1] if len(sys.argv) > 1 else f"cdna_kernels/{NAME}.s"
    open(path, "w").write(gen(opt))
```

```python
import sys, struct, math

NAME = "gated_mix__softmax_full_mha__mha_block__prompt"
QF = 0
KVF = 4 << 20
GOFF = 12 << 20
OF = 13 << 20
WS_BYTES = 17 << 20


def f32(x):
    return "0x%08x" % struct.unpack("<I", struct.pack("<f", x))[0]


class A:
    def __init__(self):
        self.L = []

    def __call__(self, s=""):
        for line in s.split("\n"):
            line = line.rstrip()
            if not line.strip():
                continue
            t = line.strip()
            if t.endswith(":") or t.startswith("."):
                self.L.append(t)
            else:
                self.L.append("    " + t)

    def text(self):
        return "\n".join(self.L) + "\n"


def vr(a, n):
    return f"v[{a}:{a+n-1}]"


def srd(a, d, base, nrec):
    a(f"s_mov_b32 s{d}, s{base}")
    a(f"s_mov_b32 s{d+1}, s{base+1}")
    a(f"s_mov_b32 s{d+2}, {nrec}")
    a(f"s_mov_b32 s{d+3}, 0x00020000")


def header(a, k):
    a(f".globl {k}")
    a(".p2align 8")
    a(f".type {k},@function")
    a(f"{k}:")


def desc(k, nv):
    acc = (nv + 3) // 4 * 4
    return f""".amdhsa_kernel {k}
  .amdhsa_next_free_vgpr {nv}
  .amdhsa_next_free_sgpr 102
  .amdhsa_accum_offset {acc}
  .amdhsa_group_segment_fixed_size 0
  .amdhsa_kernarg_size 80
  .amdhsa_user_sgpr_count 2
  .amdhsa_user_sgpr_kernarg_segment_ptr 1
  .amdhsa_system_sgpr_workgroup_id_x 1
.end_amdhsa_kernel
"""


STAMP = 16 << 20
STAMP = 20 << 20


def stamp0(a, opt):
    if opt.get("stamp"):
        a("s_memrealtime s[92:93]")
        a("s_memtime s[94:95]")


def stamp(a, opt, kid, slot, wsreg=12):
    if not opt.get("stamp"):
        return
    a(f"""
    s_memrealtime s[96:97]
    s_memtime s[98:99]
    s_mov_b32 s88, s{wsreg}
    s_mov_b32 s89, s{wsreg+1}
    s_mov_b32 s90, {32 << 20}
    s_mov_b32 s91, 0x00020000
    s_lshl_b32 s100, s2, 3
    s_add_u32 s100, s100, s30
    s_lshl_b32 s100, s100, 7
    s_add_u32 s100, s100, {STAMP + kid * 262144 + slot * 16}
    s_waitcnt lgkmcnt(0)
    v_mov_b32 v252, s92
    v_mov_b32 v253, s96
    v_mov_b32 v254, s94
    v_mov_b32 v255, s98
    v_mov_b32 v251, 0
    buffer_store_dwordx4 v[252:255], v251, s[88:91], s100 offen
    s_nop 1
    """)


def mfma(d, x, y, c=None):
    cs = "0" if c is None else vr(c, 16)
    return f"v_mfma_f32_32x32x16_bf16 {vr(d,16)}, {vr(x,4)}, {vr(y,4)}, {cs}"


def k1(a, opt):
    k = "qkv_kernel"
    header(a, k)
    SLOT = 40960
    stamp0(a, opt)
    ST = opt.get("k1_store", "")
    a(f"""
    s_cmp_ge_u32 s2, 256
    s_cbranch_scc1 K1_end
    s_load_dwordx4 s[4:7], s[0:1], 0          ; x, A_wqkv
    s_load_dwordx2 s[8:9], s[0:1], 32         ; B_wqkv
    s_load_dwordx2 s[10:11], s[0:1], 48       ; gate_w
    s_load_dwordx2 s[12:13], s[0:1], 72       ; ws
    v_lshrrev_b32 v1, 6, v0
    v_and_b32 v2, 63, v0                      ; lane
    s_and_b32 s28, s2, 7
    s_lshr_b32 s29, s2, 3
    v_readfirstlane_b32 s30, v1               ; wave
    s_cmp_ge_u32 s29, 28
    s_cbranch_scc1 K1_aux
    s_mul_i32 s31, s29, 9363
    s_lshr_b32 s31, s31, 16                   ; r/7
    s_mul_i32 s32, s31, 7
    s_sub_u32 s32, s29, s32                   ; cb7
    s_and_b32 s33, s28, 1                     ; branch
    s_lshr_b32 s34, s28, 1
    s_lshl_b32 s34, s34, 2
    s_add_u32 s34, s34, s31
    s_lshl_b32 s35, s34, 1
    s_add_u32 s35, s35, s32
    s_mul_i32 s36, s35, 9363
    s_lshr_b32 s36, s36, 16
    s_mul_i32 s36, s36, 7
    s_sub_u32 s35, s35, s36
    v_lshrrev_b32 v3, 3, v2                   ; l/8
    v_and_b32 v4, 7, v2
    v_lshrrev_b32 v5, 4, v2                   ; l/16
    v_xor_b32 v6, v4, v5
    s_lshl_b32 s36, s34, 7
    s_lshl_b32 s37, s30, 4
    s_add_u32 s36, s36, s37
    v_add_u32 v7, s36, v3
    v_mul_u32_u24 v7, 896, v7
    v_lshl_add_u32 v8, v6, 4, v7              ; xa
    v_xor_b32 v6, 4, v6
    v_lshl_add_u32 v9, v6, 4, v7
    v_add_u32 v9, 7168, v9                    ; xb
    v_and_b32 v5, 1, v5
    v_lshlrev_b32 v5, 2, v5
    v_xor_b32 v5, v4, v5
    s_lshl_b32 s37, s30, 3
    v_add_u32 v7, s37, v3
    v_mul_u32_u24 v7, 2688, v7
    v_lshl_add_u32 v10, v5, 4, v7             ; w
    s_mul_i32 s38, s32, 384
    s_lshl_b32 s39, s30, 11
    s_lshl_b32 s40, s30, 10
    s_add_u32 s40, s40, 16384
    s_waitcnt lgkmcnt(0)
    """)
    srd(a, 16, 4, 1835008)
    a("""
    s_cmp_eq_u32 s33, 0
    s_cselect_b32 s20, s6, s8
    s_cselect_b32 s21, s7, s9
    s_mov_b32 s22, 1204224
    s_mov_b32 s23, 0x00020000
    """)
    srd(a, 24, 12, WS_BYTES)

    def dma(slot):
        a(f"""
        s_lshl_b32 s42, s35, 7
        s_mul_i32 s43, s35, 172032
        s_add_u32 m0, s39, {slot}
        s_add_u32 s43, s43, s38
        buffer_load_dwordx4 v8, s[16:19], s42 offen lds
        s_add_u32 m0, m0, 1024
        s_add_u32 s35, s35, 1
        buffer_load_dwordx4 v9, s[16:19], s42 offen lds
        s_add_u32 m0, s40, {slot}
        s_add_u32 s44, s43, 128
        buffer_load_dwordx4 v10, s[20:23], s43 offen lds
        s_add_u32 m0, m0, 8192
        s_add_u32 s45, s43, 256
        buffer_load_dwordx4 v10, s[20:23], s44 offen lds
        s_add_u32 m0, m0, 8192
        s_cmp_eq_u32 s35, 7
        buffer_load_dwordx4 v10, s[20:23], s45 offen lds
        s_cselect_b32 s35, 0, s35
        """)
    a("s_mov_b32 s41, 0")
    a("K1_pro:")
    dma("s41")
    a(f"""
    s_add_u32 s41, s41, {SLOT}
    s_cmp_lt_u32 s41, {4*SLOT}
    s_cbranch_scc1 K1_pro
    """)
    XR, WR, XF, WF, ACC = 12, 16, 20, 36, 84
    a(f"""
    v_and_b32 v3, 31, v2                      ; n
    v_lshrrev_b32 v4, 5, v2                   ; hf
    s_and_b32 s46, s30, 3
    s_lshr_b32 s47, s30, 2
    v_lshrrev_b32 v5, 1, v3
    v_and_b32 v5, 7, v5
    v_xor_b32 v5, v4, v5
    s_lshl_b32 s48, s46, 12
    v_lshlrev_b32 v6, 7, v3
    v_lshl_add_u32 v6, v5, 4, v6
    v_add_u32 v{XR}, s48, v6
    v_xor_b32 v{XR+1}, 32, v{XR}
    v_xor_b32 v{XR+2}, 64, v{XR}
    v_xor_b32 v{XR+3}, 96, v{XR}
    v_bfe_u32 v5, v2, 2, 2                    ; r
    v_lshl_add_u32 v6, v4, 3, v5              ; 8hf + r
    v_lshlrev_b32 v6, 7, v6
    v_and_b32 v7, 3, v2
    v_lshl_add_u32 v6, v7, 3, v6
    v_bfe_u32 v7, v2, 4, 1
    v_lshl_add_u32 v6, v7, 5, v6
    v_bfe_u32 v7, v2, 3, 1                    ; r>>1
    v_lshl_add_u32 v6, v7, 6, v6              ; (half0 ^ r>>1)*64
    v_add_u32 v6, 16384, v6
    s_mul_i32 s48, s47, 3
    """)
    for i in range(3):
        a(f"""
        s_add_u32 s49, s48, {i}
        s_lshr_b32 s50, s49, 1
        s_lshl_b32 s50, s50, 13
        s_and_b32 s49, s49, 1
        s_lshl_b32 s49, s49, 6
        v_xor_b32 v{WR+i}, s49, v6
        v_add_u32 v{WR+i}, s50, v{WR+i}
        """)
    for i in range(48):
        a(f"v_mov_b32 v{ACC+i}, 0")
    a(f"""
    s_mul_i32 s51, s32, 6
    s_add_u32 s51, s51, s48
    s_mov_b32 s52, 0                          ; iteration
    s_waitcnt vmcnt(15)
    s_cmp_ge_u32 s51, 28
    s_cbranch_scc1 K1_C_in
    s_cmp_eq_u32 s51, 27
    s_cbranch_scc1 K1_B_in
    s_branch K1_A_in
    """)

    def reads(st):
        a(f"ds_read_b128 {vr(XF+4*st,4)}, v{XR+st}")
        for i in range(3):
            b = WF + (st * 3 + i) * 4
            a(f"ds_read_b64_tr_b16 {vr(b,2)}, v{WR+i} offset:{st*2048}")
            a(f"ds_read_b64_tr_b16 {vr(b+2,2)}, v{WR+i} offset:{st*2048+512}")

    def mm(st, types):
        for i in range(3):
            w = WF + (st * 3 + i) * 4
            x = XF + 4 * st
            if types[i] == "q":
                a(mfma(ACC + 16 * i, w, x, ACC + 16 * i))
            else:
                a(mfma(ACC + 16 * i, x, w, ACC + 16 * i))

    def epi_qk(i):
        c = ACC + 16 * i
        a(f"""
        s_add_u32 s53, s51, {i}
        s_cmp_ge_u32 s53, 14
        s_cselect_b32 s54, 14, 0
        s_cselect_b32 s55, 1.0, s60
        s_cselect_b32 s56, s62, s61
        s_cselect_b32 s57, s64, s63
        s_sub_u32 s53, s53, s54
        s_lshl_b32 s53, s53, 3
        """)
        for r in range(16):
            a(f"v_mul_f32 v{c+r}, s55, v{c+r}")
        for r in range(8):
            a(f"v_cvt_pk_bf16_f32 v{c+r}, v{c+2*r}, v{c+2*r+1}")
        for q in range(4):
            t = 20 + 2 * q
            a(f"""
            v_add_u32 v{t}, s53, v4
            s_add_u32 s53, s53, 2
            v_mul_u32_u24 v{t+1}, 9363, v{t}
            v_lshrrev_b32 v{t+1}, 16, v{t+1}
            v_mad_u32_u24 v{t+1}, v{t+1}, s56, v5
            v_lshl_add_u32 v{t+1}, v{t}, 8, v{t+1}
            buffer_store_dwordx2 {vr(c+2*q,2)}, v{t+1}, s[24:27], s57 offen {ST}
            """)

    def epi_v(i):
        c = ACC + 16 * i
        t = 28 + 2 * i
        a(f"""
        s_add_u32 s53, s51, {i-28}
        s_lshl_b32 s53, s53, 5
        v_add_u32 v{t}, s53, v3
        v_mul_u32_u24 v{t+1}, 2341, v{t}
        v_lshrrev_b32 v{t+1}, 16, v{t+1}
        v_mad_u32_u24 v{t+1}, v{t+1}, s65, v6
        v_lshl_add_u32 v{t+1}, v{t}, 4, v{t+1}
        """)
        for r in range(8):
            a(f"v_cvt_pk_bf16_f32 v{c+r}, v{c+2*r}, v{c+2*r+1}")
        a(f"buffer_store_dwordx4 {vr(c,4)}, v{t+1}, s[24:27], s64 offen offset:2048 {ST}")
        a(f"buffer_store_dwordx4 {vr(c+4,4)}, v{t+1}, s[24:27], s64 offen offset:3072 {ST}")

    for var, types in (("A", "qqq"), ("B", "qvv"), ("C", "vvv")):
        a(f"""
        K1_{var}_loop:
        s_cmp_lt_u32 s52, 5
        s_cbranch_scc1 K1_{var}_w10
        s_cmp_eq_u32 s52, 5
        s_cbranch_scc1 K1_{var}_w5
        s_waitcnt vmcnt(0)
        K1_{var}_w5:
        s_waitcnt vmcnt(5)
        K1_{var}_w10:
        s_waitcnt vmcnt(10)
        K1_{var}_in:
        s_barrier
        """)
        reads(0)
        reads(1)
        a(f"""
        s_sub_u32 s41, s52, 1
        s_cmp_ge_u32 s41, 3
        s_cbranch_scc1 K1_{var}_nodma
        s_mul_i32 s41, s41, {SLOT}
        """)
        dma("s41")
        a(f"K1_{var}_nodma:")
        a("s_waitcnt lgkmcnt(7)")
        mm(0, types)
        reads(2)
        a("s_waitcnt lgkmcnt(7)")
        mm(1, types)
        reads(3)
        a(f"""
        s_movk_i32 s41, {SLOT >> 2}
        s_cmp_eq_u32 s52, 3
        s_cselect_b32 s41, {(-3*SLOT >> 2) & 0xffffffff}, s41
        s_lshl_b32 s41, s41, 2
        """)
        a("s_waitcnt lgkmcnt(7)")
        mm(2, types)
        for r in list(range(XR, XR + 4)) + list(range(WR, WR + 3)):
            a(f"v_add_u32 v{r}, s41, v{r}")
        a("s_waitcnt lgkmcnt(0)")
        mm(3, types)
        a(f"""
        s_add_u32 s52, s52, 1
        s_cmp_lt_u32 s52, 7
        s_cbranch_scc1 K1_{var}_loop
        """)
        stamp(a, opt, 0, 0)
        a(f"""
        s_lshl_b32 s58, s33, 10
        s_lshl_b32 s59, s34, 2
        s_add_u32 s58, s58, s59
        s_add_u32 s58, s58, s46
        s_mov_b32 s60, {f32(math.log2(math.e) / math.sqrt(28.0))}
        s_mov_b32 s61, {64*2048-1792}
        s_mov_b32 s62, {64*4096-1792}
        s_lshl_b32 s63, s58, 11
        s_lshl_b32 s64, s58, 12
        s_add_u32 s64, s64, {KVF}
        s_mov_b32 s65, {64*4096-448}
        v_lshlrev_b32 v5, 3, v3
        v_lshlrev_b32 v6, 9, v4
        s_nop 7
        """)
        for i in range(3):
            (epi_qk if types[i] == "q" else epi_v)(i)
        stamp(a, opt, 0, 1)
        if opt.get("stamp"):
            a("s_waitcnt vmcnt(0)")
        stamp(a, opt, 0, 2)
        a("s_endpgm")

    a(f"""
    K1_aux:
    s_sub_u32 s29, s29, 28
    s_lshl_b32 s28, s28, 2
    s_add_u32 s28, s28, s29                   ; u = 0..31
    v_lshrrev_b32 v3, 3, v2
    v_and_b32 v4, 7, v2
    s_lshl_b32 s31, s28, 6
    s_lshl_b32 s32, s30, 3
    s_add_u32 s31, s31, s32
    v_add_u32 v5, s31, v3                     ; token
    v_mul_u32_u24 v6, 896, v5
    v_lshl_add_u32 v6, v4, 4, v6
    v_lshlrev_b32 v7, 4, v4
    s_waitcnt lgkmcnt(0)
    """)
    srd(a, 16, 4, 1835008)
    srd(a, 20, 10, 896)
    srd(a, 24, 12, WS_BYTES)
    for i in range(7):
        a(f"buffer_load_dwordx4 {vr(16+4*i,4)}, v6, s[16:19], 0 offen offset:{128*i}")
        a(f"buffer_load_dwordx4 {vr(48+4*i,4)}, v7, s[20:23], 0 offen offset:{128*i}")
    a(f"""
    v_lshrrev_b32 v8, 4, v2
    v_and_b32 v9, 15, v2
    s_lshl_b32 s33, s28, 6
    s_add_u32 s33, s33, s32                   ; hb*64 + w*8
    v_add_u32 v8, s33, v8
    v_lshlrev_b32 v10, 11, v8
    v_lshl_add_u32 v10, v9, 4, v10            ; Q pad
    v_lshlrev_b32 v11, 12, v8
    v_lshrrev_b32 v13, 2, v9
    v_and_b32 v14, 3, v9
    v_lshl_add_u32 v12, v13, 9, v11
    v_lshl_add_u32 v12, v14, 4, v12           ; V pad
    v_lshl_add_u32 v11, v9, 4, v11            ; K pad
    v_mov_b32 v80, 0
    v_mov_b32 v81, 0
    v_mov_b32 v82, 0
    v_mov_b32 v83, 0
    v_mov_b32 v84, 0x3f803f80
    v_mov_b32 v85, 0x3f803f80
    v_mov_b32 v86, 0x3f803f80
    v_mov_b32 v87, 0x3f803f80
    s_mov_b32 s34, {4*2048}
    s_mov_b32 s35, {KVF}
    s_mov_b32 s36, {KVF+4*4096}
    buffer_store_dwordx4 v[80:83], v10, s[24:27], 0 offen offset:1792 {ST}
    buffer_store_dwordx4 v[80:83], v10, s[24:27], s34 offen offset:1792 {ST}
    buffer_store_dwordx4 v[80:83], v11, s[24:27], s35 offen offset:1792 {ST}
    buffer_store_dwordx4 v[80:83], v11, s[24:27], s36 offen offset:1792 {ST}
    buffer_store_dwordx4 v[84:87], v12, s[24:27], s35 offen offset:{2048+448} {ST}
    buffer_store_dwordx4 v[84:87], v12, s[24:27], s36 offen offset:{2048+448} {ST}
    v_mov_b32 v13, 0
    s_waitcnt vmcnt(6)
    """)
    for i in range(28):
        a(f"""
        v_and_b32 v14, 0xffff0000, v{16+i}
        v_and_b32 v15, 0xffff0000, v{48+i}
        v_fmac_f32 v13, v14, v15
        v_lshlrev_b32 v14, 16, v{16+i}
        v_lshlrev_b32 v15, 16, v{48+i}
        v_fmac_f32 v13, v14, v15
        """)
    a(f"""
    s_nop 1
    v_add_f32_dpp v13, v13, v13 quad_perm:[1,0,3,2] row_mask:0xf bank_mask:0xf
    s_nop 1
    v_add_f32_dpp v13, v13, v13 quad_perm:[2,3,0,1] row_mask:0xf bank_mask:0xf
    s_nop 1
    v_add_f32_dpp v13, v13, v13 row_half_mirror row_mask:0xf bank_mask:0xf
    v_mul_f32 v13, {f32(-math.log2(math.e))}, v13
    v_exp_f32 v13, v13
    s_nop 0
    v_add_f32 v13, 1.0, v13
    v_rcp_f32 v13, v13
    v_lshlrev_b32 v5, 2, v5
    s_mov_b32 s34, {GOFF}
    v_cmp_eq_u32 vcc, 0, v4
    s_and_saveexec_b64 s[36:37], vcc
    buffer_store_dword v13, v5, s[24:27], s34 offen {ST}
    K1_end:
    s_endpgm
    """)
    return k, 132


def k2(a, opt):
    k = "attn_kernel"
    header(a, k)
    ST = opt.get("k2_store", "")
    O, S, Q, K, V = 16, 80, 144, 176, 208
    IDX, VQ, VK, VV, VG = 4, 5, 6, 7, 8
    stamp0(a, opt)
    a(f"""
    s_cmp_ge_u32 s2, 256
    s_cbranch_scc1 K2_end
    {"s_setprio 3" if opt.get("ladder") else ""}
    s_load_dwordx2 s[12:13], s[0:1], 72       ; ws
    v_lshrrev_b32 v1, 6, v0
    v_and_b32 v2, 63, v0                      ; lane
    s_and_b32 s28, s2, 7
    s_lshr_b32 s29, s2, 3
    v_readfirstlane_b32 s30, v1               ; wave
    s_lshl_b32 s28, s28, 2
    s_and_b32 s31, s29, 3
    s_add_u32 s31, s31, s28                   ; hb
    s_lshr_b32 s32, s29, 2
    s_and_b32 s33, s30, 3
    s_lshr_b32 s34, s30, 2
    v_lshlrev_b32 v{VQ}, 3, v2                ; lane*8
    v_and_b32 v3, 0x33, v2
    v_and_b32 v9, 4, v2
    v_lshl_or_b32 v3, v9, 1, v3
    v_and_b32 v9, 8, v2
    v_lshrrev_b32 v9, 1, v9
    v_or_b32 v3, v3, v9
    v_lshlrev_b32 v{VK}, 3, v3
    v_lshlrev_b32 v{VV}, 4, v2
    s_lshl_b32 s35, s32, 3
    s_lshl_b32 s36, s34, 2
    s_add_u32 s35, s35, s36
    s_lshl_b32 s36, s31, 6                    ; hb*64
    s_lshl_b32 s37, s33, 4
    s_add_u32 s37, s37, s36
    s_lshl_b32 s37, s37, 12
    s_add_u32 s37, s37, {KVF}
    s_lshl_b32 s38, s32, 1
    s_mov_b32 s39, s38                        ; for V
    s_add_u32 s36, s36, s35
    s_waitcnt lgkmcnt(0)
    """)
    srd(a, 24, 12, WS_BYTES)

    def loadK(u):
        a(f"""
        s_and_b32 s40, s38, 15
        s_lshl_b32 s40, s40, 12
        s_add_u32 s40, s40, s37
        s_add_u32 s38, s38, 1
        """)
        for i in range(4):
            a(f"buffer_load_dwordx2 {vr(K+8*u+2*i,2)}, v{VK}, s[24:27], s40 offen offset:{512*i}")

    def loadV(u):
        a(f"""
        s_and_b32 s41, s39, 15
        s_lshl_b32 s41, s41, 12
        s_add_u32 s41, s41, s37
        s_add_u32 s39, s39, 1
        """)
        for i in range(2):
            a(f"buffer_load_dwordx4 {vr(V+8*u+4*i,4)}, v{VV}, s[24:27], s41 offen offset:{2048+1024*i}")

    def loadQ(j):
        a(f"""
        s_add_u32 s42, s33, {j}
        s_and_b32 s42, s42, 3
        s_add_u32 s42, s42, s36
        s_lshl_b32 s42, s42, 11
        """)
        for i in range(4):
            a(f"buffer_load_dwordx2 {vr(Q+8*j+2*i,2)}, v{VQ}, s[24:27], s42 offen offset:{512*i}")

    loadK(0)
    loadQ(0)
    loadQ(1)
    loadV(0)
    loadQ(2)
    loadQ(3)
    a(f"""
    v_and_b32 v9, 31, v2
    s_add_u32 s43, s35, s33
    s_lshl_b32 s42, s43, 7
    s_add_u32 s42, s42, {GOFF}
    v_lshlrev_b32 v9, 2, v9
    buffer_load_dword v{VG}, v9, s[24:27], s42 offen
    """)
    loadK(1); loadV(1); loadK(2); loadV(2); loadK(3)
    a(f"v_mov_b32 v{IDX}, 0xdddddddd")
    for i in range(64):
        a(f"v_mov_b32 v{O+i}, 0")
    for i in range(16):
        a(f"v_mov_b32 v{S+48+i}, 0")
    for i in range(8):
        a(f"v_mov_b32 v{V+24+i}, 0")
    a("s_mov_b32 s44, 0")
    a("s_mov_b32 s45, 4")
    a("s_waitcnt vmcnt(31)")
    a(mfma(S, K, Q))
    a(mfma(S, K + 4, Q + 4, S))
    a("s_waitcnt vmcnt(16)")
    a("s_nop 10")

    def smf(o, v, s):
        return f"v_smfmac_f32_32x32x32_bf16 {vr(o,16)}, {vr(v,4)}, {vr(s,8)}, v{IDX}"

    def ex(j, r0):
        for r in range(r0, r0 + 4):
            a(f"v_exp_f32 v{S+16*j+r}, v{S+16*j+r}")

    if opt.get("stamp"):
        a("s_memrealtime s[84:85]")
        a("s_memtime s[86:87]")
    a(".p2align 6")
    a("K2_loop:")
    if opt.get("ladder"):
        a("""
        s_cmp_ge_u32 s45, 3
        s_cbranch_scc1 K2_pa
        s_setprio 0
        s_cmp_eq_u32 s45, 1
        s_cbranch_scc1 K2_pz
        s_setprio 1
        s_branch K2_pz
        K2_pa:
        s_cmp_eq_u32 s45, 4
        s_cbranch_scc1 K2_pz
        s_setprio 2
        K2_pz:
        """)
    for u in range(4):
        for j in range(4):
            nj = (j + 1) % 4
            ku = u if j < 3 else (u + 1) % 4
            pj = (j - 1) % 4
            vu = u if j > 0 else (u - 1) % 4
            if j == 3:
                a("s_waitcnt vmcnt(12)")
            a(mfma(S + 16 * nj, K + 8 * ku, Q + 8 * nj))
            ex(j, 0)
            a(mfma(S + 16 * nj, K + 8 * ku + 4, Q + 8 * nj + 4, S + 16 * nj))
            ex(j, 4)
            a(smf(O + 16 * pj, V + 8 * vu, S + 16 * pj))
            if j == 1:
                loadV((u - 1) % 4)
            if j == 3:
                loadK(u)
            ex(j, 8)
            a(smf(O + 16 * pj, V + 8 * vu + 4, S + 16 * pj + 8))
            ex(j, 12)
    a("""
    s_sub_u32 s45, s45, 1
    s_cmp_lg_u32 s45, 0
    s_cbranch_scc1 K2_loop
    s_nop 1
    """)
    a(smf(O + 48, V + 24, S + 48))
    a(smf(O + 48, V + 28, S + 56))
    stamp(a, opt, 1, 0)
    if opt.get("stamp"):
        a("s_mov_b32 s92, s84")
        a("s_mov_b32 s94, s86")
    stamp(a, opt, 1, 1)
    a("K2_reduce:")
    a(f"""
    s_lshl_b32 s46, s34, 2                    ; qh*4
    """)
    for j in (1, 2, 3):
        a(f"""
        s_add_u32 s47, s33, {j}
        s_and_b32 s47, s47, 3
        s_add_u32 s47, s47, s46
        s_mul_i32 s47, s47, 12288
        v_add_u32 v{9+j}, s47, v{VV}
        """)
    a("s_mul_i32 s47, s30, 12288")
    a(f"v_add_u32 v9, s47, v{VV}")
    a("s_nop 4")
    for j in (1, 2, 3):
        if j == 3:
            a("s_nop 7")
        for r in range(4):
            a(f"ds_write_b128 v{9+j}, {vr(O+16*j+4*r,4)} offset:{(j-1)*4096+r*1024}")
    a("v_mov_b32 v13, 0")
    a("v_mov_b32 v14, 98304")
    a("ds_write_b32 v14, v13")
    a("s_waitcnt lgkmcnt(0)")
    a("s_barrier")
    for j in (1, 2, 3):
        for r in range(4):
            a(f"ds_read_b128 {vr(O+16*j+4*r,4)}, v9 offset:{(j-1)*4096+r*1024}")
    a(f"""
    s_cmp_ge_u32 s31, 16
    s_cselect_b32 s48, -1.0, 1.0
    s_cselect_b32 s49, 1.0, 0
    s_waitcnt vmcnt(0)
    v_mov_b32 v10, s49
    v_fma_f32 v10, v{VG}, s48, v10            ; g or 1-g
    """)
    for j in (1, 2, 3):
        a(f"s_waitcnt lgkmcnt({8-4*j+4 if j < 3 else 0})")
        for r in range(16):
            a(f"v_add_f32 v{O+r}, v{O+r}, v{O+16*j+r}")
    a(f"""
    v_mov_b32 v11, v{O+12}
    v_mov_b32 v12, v{O+12}
    v_mov_b32 v13, 0
    s_nop 0
    v_permlane32_swap_b32 v11, v12
    """)
    for r in range(16):
        a(f"v_fma_f32 v13, v{O+r}, 0, v13")
    a(f"""
    v_cmp_gt_u32 vcc, 32, v2
    v_rcp_f32 v11, v12
    v_add_f32 v13, v13, v12
    v_mul_f32 v11, v11, v10
    v_cndmask_b32 v15, 0, v11, vcc
    """)
    for r in range(12):
        a(f"v_mul_f32 v{O+r}, v{O+r}, v11")
    for r in range(12, 16):
        a(f"v_mul_f32 v{O+r}, v{O+r}, v15")
    for r in range(8):
        a(f"v_cvt_pk_bf16_f32 v{O+r}, v{O+2*r}, v{O+2*r+1}")
    a(f"""
    s_lshl_b32 s47, s43, 5
    s_add_u32 s47, s47, s31
    s_lshl_b32 s47, s47, 11
    s_add_u32 s47, s47, {OF}
    buffer_store_dwordx4 {vr(O,4)}, v{VV}, s[24:27], s47 offen {ST}
    buffer_store_dwordx4 {vr(O+4,4)}, v{VV}, s[24:27], s47 offen offset:1024 {ST}
    s_cmp_lg_u32 s44, 0
    s_cbranch_scc1 K2_end
    ; unshifted softmax is only kept when the row sums are comfortably inside the f32 range
    v_cmp_nle_f32 vcc, {f32(2.0**-60)}, v13
    v_cmp_nge_f32 s[48:49], {f32(2.0**60)}, v13
    """.replace(f"v_cmp_nge_f32 s[48:49], {f32(2.0**60)}, v13", f"v_mov_b32 v11, {f32(2.0**60)}\n v_cmp_nge_f32 s[48:49], v11, v13"))
    a(f"""
    s_or_b64 vcc, vcc, s[48:49]
    s_cbranch_vccz K2_ok
    v_mov_b32 v13, 1
    ds_write_b32 v14, v13
    K2_ok:
    s_waitcnt lgkmcnt(0)
    s_barrier
    ds_read_b32 v13, v14
    s_waitcnt lgkmcnt(0)
    """)
    stamp(a, opt, 1, 2)
    a(f"""
    v_readfirstlane_b32 s47, v13
    s_cmp_eq_u32 s47, 0
    s_cbranch_scc1 K2_end
    """)
    M = 240
    a("s_waitcnt vmcnt(0)")
    a("s_mov_b32 s44, 1")
    for j in range(4):
        a(f"v_mov_b32 v{M+j}, 0xff800000")
    a("s_mov_b32 s45, 16")
    a("K2_f1:")
    loadK(0)
    a("s_waitcnt vmcnt(0)")
    for j in range(4):
        a(mfma(S + 16 * j, K, Q + 8 * j))
        a(mfma(S + 16 * j, K + 4, Q + 8 * j + 4, S + 16 * j))
    a("s_nop 15")
    for j in range(4):
        for r in range(0, 16, 2):
            a(f"v_max3_f32 v{M+j}, v{M+j}, v{S+16*j+r}, v{S+16*j+r+1}")
    a("""
    s_sub_u32 s45, s45, 1
    s_cmp_lg_u32 s45, 0
    s_cbranch_scc1 K2_f1
    """)
    a("v_lshlrev_b32 v9, 2, v2")
    for j in range(4):
        a(f"""
        s_add_u32 s47, s33, {j}
        s_and_b32 s47, s47, 3
        s_add_u32 s47, s47, s46
        s_lshl_b32 s47, s47, 10
        v_add_u32 v{10+j}, s47, v9
        """)
    a("s_lshl_b32 s47, s33, 8")
    a("s_barrier")
    for j in range(4):
        a(f"v_add_u32 v9, s47, v{10+j}")
        a(f"ds_write_b32 v9, v{M+j}")
    a("s_waitcnt lgkmcnt(0)")
    a("s_barrier")
    for j in range(4):
        for q in range(4):
            a(f"ds_read_b32 v{S+4*j+q}, v{10+j} offset:{256*q}")
    a("s_waitcnt lgkmcnt(0)")
    for j in range(4):
        a(f"""
        v_max3_f32 v{M+j}, v{S+4*j}, v{S+4*j+1}, v{S+4*j+2}
        v_max_f32 v{M+j}, v{M+j}, v{S+4*j+3}
        v_mov_b32 v9, v{M+j}
        s_nop 1
        v_permlane32_swap_b32 v9, v{M+j}
        s_nop 1
        v_max_f32 v{M+j}, v{M+j}, v9
        """)
    for i in range(64):
        a(f"v_mov_b32 v{O+i}, 0")
    a("s_mov_b32 s45, 16")
    a("s_mov_b32 s39, s38")
    a("s_barrier")
    a("K2_f2:")
    loadK(0)
    loadV(0)
    a("s_waitcnt vmcnt(0)")
    for j in range(4):
        a(mfma(S + 16 * j, K, Q + 8 * j))
        a(mfma(S + 16 * j, K + 4, Q + 8 * j + 4, S + 16 * j))
    a("s_nop 15")
    for j in range(4):
        for r in range(16):
            a(f"v_sub_f32 v{S+16*j+r}, v{S+16*j+r}, v{M+j}")
        for r in range(16):
            a(f"v_exp_f32 v{S+16*j+r}, v{S+16*j+r}")
    a("s_nop 3")
    for j in range(4):
        a(smf(O + 16 * j, V, S + 16 * j))
        a(smf(O + 16 * j, V + 4, S + 16 * j + 8))
    a("""
    s_nop 15
    s_sub_u32 s45, s45, 1
    s_cmp_lg_u32 s45, 0
    s_cbranch_scc1 K2_f2
    s_branch K2_reduce
    K2_end:
    s_endpgm
    """)
    return k, 244


def k3(a, opt):
    k = "proj_kernel"
    header(a, k)
    OFR, WFR, ACC = 16, 80, 112
    stamp0(a, opt)
    a(f"""
    s_cmp_ge_u32 s2, 224
    s_cbranch_scc1 K3_end
    s_load_dwordx2 s[4:5], s[0:1], 16         ; A_wo
    s_load_dwordx2 s[6:7], s[0:1], 40         ; B_wo
    s_load_dwordx2 s[8:9], s[0:1], 56         ; out
    s_load_dwordx2 s[12:13], s[0:1], 72       ; ws
    v_lshrrev_b32 v1, 6, v0
    v_and_b32 v2, 63, v0
    s_and_b32 s28, s2, 7
    s_lshr_b32 s29, s2, 3
    v_readfirstlane_b32 s30, v1               ; wave
    s_mul_i32 s31, s29, 9363
    s_lshr_b32 s31, s31, 16
    s_mul_i32 s32, s31, 7
    s_sub_u32 s32, s29, s32
    s_lshl_b32 s28, s28, 2
    s_add_u32 s31, s31, s28
    s_and_b32 s33, s30, 3                     ; k quarter
    s_lshr_b32 s34, s30, 2
    v_lshlrev_b32 v3, 4, v2
    v_lshrrev_b32 v4, 3, v2
    v_and_b32 v5, 7, v2
    v_bfe_u32 v6, v2, 4, 1
    v_lshlrev_b32 v6, 2, v6
    v_xor_b32 v5, v5, v6
    v_mul_u32_u24 v4, 896, v4
    v_lshl_add_u32 v4, v5, 4, v4
    s_mul_i32 s35, s33, {112*896}
    s_lshl_b32 s36, s32, 7
    s_add_u32 s35, s35, s36
    s_mul_i32 s36, s30, {112*128}
    s_lshl_b32 s37, s31, 1
    s_add_u32 s37, s37, s34
    s_lshl_b32 s37, s37, 5
    s_lshl_b32 s38, s33, 3
    s_add_u32 s37, s37, s38
    s_lshl_b32 s37, s37, 11
    s_add_u32 s37, s37, {OF}
    s_waitcnt lgkmcnt(0)
    s_cmp_eq_u32 s34, 0
    s_cselect_b32 s16, s4, s6
    s_cselect_b32 s17, s5, s7
    s_mov_b32 s18, {448*896}
    s_mov_b32 s19, 0x00020000
    """)
    srd(a, 20, 8, 2048 * 896)
    srd(a, 24, 12, WS_BYTES)
    a("s_mov_b32 m0, s36")
    a("s_nop 0")
    for i in range(14):
        a(f"buffer_load_dwordx4 v4, s[16:19], s35 offen lds")
        if i < 13:
            a("s_add_u32 m0, m0, 1024")
            a(f"s_add_u32 s35, s35, {8*896}")
    for i in range(16):
        if i % 4 == 0 and i:
            a("s_add_u32 s37, s37, 4096")
        a(f"buffer_load_dwordx4 {vr(OFR+4*i,4)}, v3, s[24:27], s37 offen offset:{(i%4)*1024}")
    a(f"""
    v_mov_b32 v8, 0
    v_mov_b32 v9, 0
    v_lshlrev_b32 v7, 3, v2
    ds_write_b64 v7, v[8:9] offset:0
    """.replace("ds_write_b64 v7, v[8:9] offset:0", f"v_add_u32 v7, {896*128}, v7\n ds_write_b64 v7, v[8:9]"))
    a(f"""
    v_lshrrev_b32 v5, 5, v2                   ; hf
    v_bfe_u32 v6, v2, 2, 2                    ; r
    v_lshl_add_u32 v6, v5, 2, v6
    v_lshlrev_b32 v6, 7, v6
    v_and_b32 v7, 3, v2
    v_lshl_add_u32 v6, v7, 3, v6
    v_bfe_u32 v7, v2, 4, 1
    v_lshl_add_u32 v6, v7, 5, v6
    v_bfe_u32 v7, v2, 3, 1
    v_lshl_add_u32 v6, v7, 6, v6
    s_mul_i32 s38, s33, {224*128}
    v_add_u32 v10, s38, v6
    v_xor_b32 v11, 64, v10
    s_waitcnt vmcnt(16) lgkmcnt(0)
    s_barrier
    """)

    def reads(i):
        off = (28 * (i // 2) + 16 * (i % 2)) * 128
        b = WFR + (i % 4) * 8
        for ct in range(2):
            a(f"ds_read_b64_tr_b16 {vr(b+4*ct,2)}, v{10+ct} offset:{off}")
            a(f"ds_read_b64_tr_b16 {vr(b+4*ct+2,2)}, v{10+ct} offset:{off+1024}")
    reads(0); reads(1); reads(2)
    for i in range(16):
        if i + 3 < 16:
            reads(i + 3)
        rem = min(3, 15 - i)
        a(f"s_waitcnt vmcnt({15-i}) lgkmcnt({4*rem})")
        b = WFR + (i % 4) * 8
        for ct in range(2):
            a(mfma(ACC + 16 * ct, b + 4 * ct, OFR + 4 * i, None if i == 0 else ACC + 16 * ct))
    stamp(a, opt, 2, 0)
    RS = 272
    a(f"""
    v_and_b32 v6, 31, v2
    s_lshl_b32 s38, s33, 6
    s_lshl_b32 s39, s34, 5
    s_add_u32 s38, s38, s39
    v_add_u32 v6, s38, v6
    v_mul_u32_u24 v6, {RS}, v6
    v_lshl_add_u32 v6, v5, 4, v6
    v_lshrrev_b32 v7, 3, v0
    v_and_b32 v8, 7, v0
    v_mul_u32_u24 v9, {RS}, v7
    v_lshl_add_u32 v9, v8, 5, v9
    s_lshl_b32 s38, s31, 6
    v_add_u32 v7, s38, v7
    v_mul_u32_u24 v7, 896, v7
    v_lshl_add_u32 v7, v8, 4, v7
    s_lshl_b32 s38, s32, 7
    s_barrier
    s_nop 4
    """)
    for ct in range(2):
        for q in range(4):
            a(f"ds_write_b128 v6, {vr(ACC+16*ct+4*q,4)} offset:{ct*128+q*32}")
    a("s_waitcnt lgkmcnt(0)")
    a("s_barrier")
    for q in range(4):
        for h in range(2):
            a(f"ds_read_b128 {vr(16+8*q+4*h,4)}, v9 offset:{q*64*RS+16*h}")
    for q in range(1, 4):
        a(f"s_waitcnt lgkmcnt({6-2*q})")
        for r in range(8):
            a(f"v_add_f32 v{16+r}, v{16+r}, v{16+8*q+r}")
    for r in range(4):
        a(f"v_cvt_pk_bf16_f32 v{16+r}, v{16+2*r}, v{16+2*r+1}")
    a("""
    buffer_store_dwordx4 v[16:19], v7, s[20:23], s38 offen
    """)
    stamp(a, opt, 2, 1)
    a("""
    K3_end:
    s_endpgm
    """)
    return k, 144


def gen(opt):
    a = A()
    launches = [("qkv_kernel", 256, 163840), ("attn_kernel", 256, 98432), ("proj_kernel", 224, 115712)]
    head = "; generated by gen.py (hand-written generator)\n"
    for kn, g, lds in launches:
        head += f"; @launch kernel={kn} grid=({g},1,1) block=(512,1,1) lds={lds}\n"
    a('.amdgcn_target "amdgcn-amd-amdhsa--gfx950"')
    a(".text")
    ks = [k1(a, opt), k2(a, opt), k3(a, opt)]
    out = head + a.text() + '.section .rodata,"a"\n'
    for kn, nv in ks:
        out += ".p2align 6\n" + desc(kn, 256 if opt.get("stamp") else nv)
    return out


if __name__ == "__main__":
    opt = dict(x.split("=", 1) for x in sys.argv[2:])
    path = sys.argv[1] if len(sys.argv) > 1 else f"cdna_kernels/{NAME}.s"
    open(path, "w").write(gen(opt))
```

```python
import sys, math
from gen import A, vr, f32, mfma, NAME

KVF = 0
OF = 8 << 20
FK = 12 << 20
FO = FK + 65536
GW = FK + 131072
WS_BYTES = 13 << 20
STAMP = 20 << 20
TAGC = 0x9E3779B9
SPIN = 1 << 16

SX, SW, SKV, SWS, SG, SWB, SO = 24, 28, 32, 36, 40, 44, 48
sW, sT, sE, sP, sTB, sHB, sKC, sM0, sCOL = 52, 53, 54, 55, 56, 57, 58, 59, 60
sKV, sWO, sPASS, sFB, sSPIN, sFL = 64, 65, 66, 67, 69, 70
O, S, Q, K, V = 16, 80, 144, 176, 208
XF, WF, AK, AV, AQ, Z = 16, 128, 184, 216, 224, 240
VL, IDX, TAG, GS, PD = 3, 4, 5, 6, 7


def sr(a):
    return f"s[{a}:{a+3}]"


def gen(opt):
    a = A()
    ST = opt.get("st", "sc1")
    nst = [0]

    def stamp(i):
        if opt.get("stamp"):
            a(f"s_memrealtime s[{72+2*i}:{73+2*i}]")

    def dump():
        if not opt.get("stamp"):
            return
        stamp(11)
        a(f"""
        s_mov_b32 s96, s20
        s_mov_b32 s97, s21
        s_mov_b32 s98, {32 << 20}
        s_mov_b32 s99, 0x00020000
        s_lshl_b32 s100, s2, 3
        s_add_u32 s100, s100, s{sW}
        s_lshl_b32 s100, s100, 6
        s_add_u32 s100, s100, {STAMP}
        s_waitcnt lgkmcnt(0)
        """)
        for q in range(3):
            for i in range(4):
                a(f"v_mov_b32 v{240+4*q+i}, s{72+2*(4*q+i)}")
            a(f"buffer_store_dwordx4 {vr(240+4*q,4)}, off, s[96:99], s100 offset:{16*q}")

    def smf(o, v, s):
        return f"v_smfmac_f32_32x32x32_bf16 {vr(o,16)}, {vr(v,4)}, {vr(s,8)}, v{IDX}"

    k = NAME + "_kernel"
    a('.amdgcn_target "amdgcn-amd-amdhsa--gfx950"')
    a(".text")
    a(f".globl {k}")
    a(".p2align 8")
    a(f".type {k},@function")
    a(f"{k}:")
    if opt.get("stamp"):
        for i in range(74, 96):
            a(f"s_mov_b32 s{i}, 0")
    stamp(0)
    a(f"""
    s_cmp_ge_u32 s2, 256
    s_cbranch_scc1 L_end
    s_load_dwordx16 s[4:19], s[0:1], 0
    s_load_dwordx2 s[20:21], s[0:1], 72
    v_lshrrev_b32 v1, 6, v0
    v_and_b32 v2, 63, v0                      ; lane
    s_and_b32 s22, s2, 7
    s_lshr_b32 s23, s2, 3
    v_readfirstlane_b32 s{sW}, v1
    s_lshl_b32 s{sP}, s22, 1
    s_and_b32 s22, s23, 1
    s_add_u32 s{sP}, s{sP}, s22
    s_lshr_b32 s{sTB}, s23, 1
    s_and_b32 s22, s{sP}, 7
    s_mul_i32 s{sKC}, s22, 3
    s_add_u32 s{sKC}, s{sKC}, s{sTB}
    s_mul_i32 s23, s{sKC}, 9363
    s_lshr_b32 s23, s23, 16
    s_mul_i32 s23, s23, 7
    s_sub_u32 s{sKC}, s{sKC}, s23
    s_mul_i32 s{sCOL}, s22, 112
    s_add_u32 s{sCOL}, s{sCOL}, 896
    v_lshrrev_b32 v11, 3, v2                  ; l/8
    v_and_b32 v12, 7, v2
    v_lshrrev_b32 v13, 4, v2                  ; l/16
    v_xor_b32 v14, v12, v13
    s_lshl_b32 s22, s{sTB}, 7
    s_lshl_b32 s23, s{sW}, 4
    s_add_u32 s22, s22, s23
    v_add_u32 v1, s22, v11
    v_mul_u32_u24 v1, 896, v1
    v_lshl_add_u32 v8, v14, 4, v1             ; x rows 16w..16w+7
    v_xor_b32 v14, 4, v14
    v_lshl_add_u32 v9, v14, 4, v1
    v_add_u32 v9, {7168-1024}, v9
    v_and_b32 v13, 1, v13
    v_lshlrev_b32 v13, 2, v13
    v_xor_b32 v248, v12, v13
    s_lshl_b32 s23, s{sW}, 3
    v_add_u32 v1, s23, v11
    v_mul_u32_u24 v1, 2688, v1
    v_lshl_add_u32 v10, v248, 4, v1
    v_cmp_eq_u32 vcc, 7, v248
    v_mov_b32 v1, 0x40000000
    s_lshl_b32 s{sM0}, s{sW}, 12
    v_cndmask_b32 v10, v10, v1, vcc
    s_cmp_lt_u32 s{sP}, 8
    s_waitcnt lgkmcnt(0)
    s_mov_b32 s{SX}, s4
    s_mov_b32 s{SX+1}, s5
    s_mov_b32 s{SX+2}, {2048*896}
    s_mov_b32 s{SX+3}, 0x00020000
    s_cselect_b32 s{SW}, s6, s12
    s_cselect_b32 s{SW+1}, s7, s13
    s_mov_b32 s{SW+2}, {448*2688}
    s_mov_b32 s{SW+3}, 0x00020000
    s_add_u32 s3, s{sKC}, s{sW}
    """)

    def nextkc():
        a(f"""
        s_add_u32 s{sKC}, s{sKC}, 1
        s_cmp_eq_u32 s{sKC}, 7
        s_cselect_b32 s{sKC}, 0, s{sKC}
        """)

    def dma(slot):
        a(f"""
        s_add_u32 m0, s{sM0}, {slot*32768}
        s_lshl_b32 s61, s{sKC}, 7
        s_mul_i32 s62, s{sKC}, 172032
        buffer_load_dwordx4 v8, {sr(SX)}, s61 offen lds
        s_add_u32 s62, s62, s{sCOL}
        buffer_load_dwordx4 v9, {sr(SX)}, s61 offen offset:1024 lds
        s_add_u32 m0, m0, 2048
        s_sub_u32 s63, s62, 128
        buffer_load_dwordx4 v10, {sr(SW)}, s62 offen lds
        s_add_u32 s{sKC}, s{sKC}, 1
        s_cmp_eq_u32 s{sKC}, 7
        buffer_load_dwordx4 v10, {sr(SW)}, s63 offen offset:1024 lds
        s_cselect_b32 s{sKC}, 0, s{sKC}
        """)

    def dmaq(c0, c1):
        a(f"""
        s_mov_b32 exec_lo, 0xf7f77f7f
        s_mov_b32 exec_hi, 0xf7f77f7f
        s_lshl_b32 s61, s{sW}, 10
        """)
        for c in range(c0, c1):
            a(f"""
            s_mul_i32 s62, s{sKC}, 172032
            s_add_u32 m0, s61, {65536 + c*8192}
            s_add_u32 s62, s62, s{sCOL}
            s_add_u32 s{sKC}, s{sKC}, 1
            s_cmp_eq_u32 s{sKC}, 7
            buffer_load_dwordx4 v10, {sr(SW)}, s62 offen lds
            s_cselect_b32 s{sKC}, 0, s{sKC}
            """)
        a("s_mov_b64 exec, -1")

    for s in range(5):
        dma(s)
    a(f"""
    s_mov_b32 s{SWS}, s20
    s_mov_b32 s{SWS+1}, s21
    s_mov_b32 s{SWS+2}, {WS_BYTES}
    s_mov_b32 s{SWS+3}, 0x00020000
    s_mov_b32 s{SG}, s16
    s_mov_b32 s{SG+1}, s17
    s_mov_b32 s{SG+2}, 896
    s_mov_b32 s{SG+3}, 0x00020000
    s_mov_b32 s61, {GW}
    s_sub_u32 s62, s3, 7
    s_cselect_b32 s3, s3, s62
    s_lshl_b32 s3, s3, 7
    v_lshlrev_b32 v1, 1, v2
    buffer_load_dword v{TAG}, off, {sr(SWS)}, s61 sc1
    buffer_load_ushort v244, v1, {sr(SG)}, s3 offen
    s_and_b32 s{sT}, s{sW}, 3
    s_lshr_b32 s{sE}, s{sW}, 2
    s_lshl_b32 s{sHB}, s{sP}, 1
    s_add_u32 s{sHB}, s{sHB}, s{sE}
    s_lshl_b32 s61, s{sHB}, 18
    s_add_u32 s{SKV}, s20, s61
    s_addc_u32 s{SKV+1}, s21, 0
    s_mov_b32 s{SKV+2}, 262144
    s_mov_b32 s{SKV+3}, 0x00020000
    s_lshl_b32 s{sKV}, s{sTB}, 2
    s_add_u32 s{sKV}, s{sKV}, s{sT}
    s_lshl_b32 s{sKV}, s{sKV}, 12
    s_lshl_b32 s{sFL}, s{sHB}, 2
    s_add_u32 s{sFL}, s{sFL}, s{sT}
    s_lshl_b32 s{sFL}, s{sFL}, 7
    s_add_u32 s{sFL}, s{sFL}, {FK}
    v_lshlrev_b32 v{VL}, 4, v2
    v_mov_b32 v{IDX}, 0xdddddddd
    v_mul_u32_u24 v249, 896, v11
    v_lshl_add_u32 v249, v248, 4, v249
    v_and_b32 v1, 31, v2                      ; n
    v_lshrrev_b32 v250, 5, v2                 ; hf
    v_bfe_u32 v12, v2, 1, 3
    v_xor_b32 v12, v250, v12
    v_and_b32 v13, 15, v2
    v_lshlrev_b32 v13, 7, v13
    v_lshl_add_u32 v12, v12, 4, v13
    v_bfe_u32 v13, v2, 4, 1
    v_lshl_add_u32 v12, v13, 12, v12
    s_lshl_b32 s61, s{sT}, 13
    v_add_u32 v11, s61, v12
    v_xor_b32 v12, 32, v11
    v_xor_b32 v14, 96, v11
    v_and_b32 v15, 3, v2
    v_lshlrev_b32 v15, 3, v15
    v_lshl_add_u32 v15, v13, 5, v15           ; 32*b4 + 8*c4
    v_xor_b32 v13, 64, v11
    s_mul_i32 s61, s{sE}, 56
    s_lshl_b32 s62, s{sE}, 3
    s_sub_u32 s62, 120, s62
    v_cmp_eq_u32 vcc, 56, v15
    v_add_u32 v15, s61, v15
    v_mov_b32 v247, s62
    v_cndmask_b32 v15, v15, v247, vcc
    v_bfe_u32 v247, v2, 3, 1
    v_lshlrev_b32 v247, 6, v247
    v_xor_b32 v15, v15, v247
    v_bfe_u32 v247, v2, 2, 2
    v_lshl_add_u32 v15, v247, 7, v15
    v_lshl_add_u32 v246, v250, 10, v15
    v_add_u32 v246, 65536, v246               ; Wq
    v_lshl_add_u32 v15, v250, 12, v15
    v_add_u32 v15, 2048, v15
    v_bfe_u32 v247, v2, 1, 1
    v_lshlrev_b32 v247, 6, v247
    v_xor_b32 v247, 112, v247
    v_lshl_add_u32 v247, v0, 7, v247
    v_cmp_eq_u32 vcc, 28, v1
    v_add_u32 v247, 65536, v247
    v_mov_b32 v245, 0
    v_cndmask_b32 v{AV}, 0, 1.0, vcc
    """)
    for i in range(1, 16):
        a(f"v_mov_b32 v{AV+i}, v{AV}")
    for i in range(4):
        a(f"v_mov_b32 v{Z+i}, 0")

    def reads(c, st):
        off = (c % 5 % 2) * 32768
        a(f"ds_read_b128 {vr(XF+16*c+4*st,4)}, v{11+st} offset:{off}")
        for m in range(2):
            b = WF + 8 * st + 4 * m
            a(f"ds_read_b64_tr_b16 {vr(b,2)}, v15 offset:{off+st*8192+m*1024}")
            a(f"ds_read_b64_tr_b16 {vr(b+2,2)}, v15 offset:{off+st*8192+m*1024+512}")

    def mm(c, st):
        x = XF + 16 * c + 4 * st
        a(mfma(AK, WF + 8 * st, x, None if (c == 0 and st == 0) else AK))
        a(mfma(AV, x, WF + 8 * st + 4, AV))

    waits = [18, 14, 14, 14, 14, 11, 7]
    for c in range(7):
        a(f"s_waitcnt vmcnt({waits[c]})")
        a("s_barrier")
        if c == 0:
            stamp(1)
        reads(c, 0)
        reads(c, 1)
        if c in (1, 2):
            dma(c - 1)
        if c == 3:
            a(f"s_sub_u32 s{sCOL}, s{sCOL}, 896")
            dmaq(0, 4)
        if c == 4:
            dmaq(4, 7)
        a("s_waitcnt lgkmcnt(5)")
        mm(c, 0)
        reads(c, 2)
        a("s_waitcnt lgkmcnt(5)")
        mm(c, 1)
        reads(c, 3)
        if c == 5:
            a("ds_write2_b64 v247, v[244:245], v[244:245] offset0:0 offset1:1")
            a(f"v_add_u32 v{TAG}, {TAGC}, v{TAG}")
            a("s_waitcnt lgkmcnt(6)")
        else:
            a("s_waitcnt lgkmcnt(5)")
        mm(c, 2)
        if c in (1, 3, 4):
            d = 65536 if c != 4 else -131072
            for r in range(11, 16):
                a(f"v_add_u32 v{r}, {d & 0xffffffff}, v{r}")
        a("s_waitcnt lgkmcnt(0)")
        mm(c, 3)
    stamp(2)
    a(f"""
    s_add_u32 s61, s{sTB}, s{sTB}
    s_add_u32 s61, s61, s61
    s_add_u32 s61, s61, s{sFL}
    v_add_u32 v8, s{sTB}, v2
    v_and_b32 v8, 15, v8
    v_lshlrev_b32 v8, 2, v8
    s_nop 4
    """)
    for r in range(8):
        a(f"v_cvt_pk_bf16_f32 v{K+r}, v{AK+2*r}, v{AK+2*r+1}")
    a(f"buffer_store_dwordx4 {vr(K,4)}, v{VL}, {sr(SKV)}, s{sKV} offen {ST}")
    a(f"buffer_store_dwordx4 {vr(K+4,4)}, v{VL}, {sr(SKV)}, s{sKV} offen offset:1024 {ST}")
    for r in range(8):
        a(f"v_cvt_pk_bf16_f32 v{V+r}, v{AV+2*r}, v{AV+2*r+1}")
    a("s_nop 0")
    for x in (0, 1, 4, 5):
        a(f"v_permlane32_swap_b32 v{V+x}, v{V+x+2}")
    a(f"buffer_store_dwordx4 {vr(V,4)}, v{VL}, {sr(SKV)}, s{sKV} offen offset:2048 {ST}")
    a(f"buffer_store_dwordx4 {vr(V+4,4)}, v{VL}, {sr(SKV)}, s{sKV} offen offset:3072 {ST}")
    a("s_waitcnt vmcnt(4)")
    a("s_barrier")
    D = 6

    def rq(st):
        b = WF + 4 * (st % 8)
        a(f"ds_read_b64_tr_b16 {vr(b,2)}, v246 offset:{st*2048}")
        a(f"ds_read_b64_tr_b16 {vr(b+2,2)}, v246 offset:{st*2048+512}")
    for st in range(D):
        rq(st)
    for st in range(28):
        if st + D < 28:
            rq(st + D)
        a(f"s_waitcnt lgkmcnt({2*min(D, 27-st)})")
        a(mfma(AQ, WF + 4 * (st % 8), XF + 4 * st, None if st == 0 else AQ))
    for j in range(4):
        a(f"v_mfma_f32_32x32x16_bf16 {vr(O+16*j,16)}, {vr(Z,4)}, {vr(Z,4)}, 0")
    stamp(3)
    a(f"""
    s_waitcnt vmcnt(0)
    s_mov_b64 exec, 1
    buffer_store_dword v{TAG}, off, {sr(SWS)}, s61 sc1
    s_mov_b64 exec, -1
    buffer_load_dword v{PD}, v8, {sr(SWS)}, s{sFL} offen sc1
    s_mov_b32 s62, {f32(math.log2(math.e) / math.sqrt(28.0))}
    s_lshl_b32 s61, s{sW}, 11
    s_add_u32 s61, s61, 131072
    v_add_u32 v11, s61, v{VL}
    v_mov_b32 v1, v{AQ+12}
    v_mov_b32 v{GS}, v{AQ+12}
    v_cmp_gt_u32 vcc, 32, v2
    """)
    stamp(4)
    for r in range(16):
        a(f"v_mul_f32 v{AQ+r}, s62, v{AQ+r}")
    a(f"v_permlane32_swap_b32 v1, v{GS}")
    for r in range(8):
        a(f"v_cvt_pk_bf16_f32 v{Q+24+r}, v{AQ+2*r}, v{AQ+2*r+1}")
    a(f"""
    v_cndmask_b32 v{Q+30}, 0, v{Q+30}, vcc
    ds_write_b128 v11, {vr(Q+24,4)}
    ds_write_b128 v11, {vr(Q+28,4)} offset:1024
    s_cmp_lt_u32 s{sP}, 8
    s_cselect_b32 s62, {f32(-math.log2(math.e))}, s62
    s_cbranch_scc1 L_gs
    s_mov_b32 s62, {f32(math.log2(math.e))}
    L_gs:
    v_mul_f32 v{GS}, s62, v{GS}
    v_exp_f32 v{GS}, v{GS}
    s_lshl_b32 s63, s{sE}, 2
    """)
    for j in range(3):
        a(f"""
        s_add_u32 s61, s{sT}, {j+1}
        s_and_b32 s61, s61, 3
        s_add_u32 s61, s61, s63
        s_lshl_b32 s62, s61, 11
        s_lshl_b32 s61, s61, 12
        s_add_u32 s62, s62, 131072
        s_add_u32 s61, s61, {65536 + j*32768}
        v_add_u32 v{(11, 1, 15)[j]}, s62, v{VL}
        v_add_u32 v{12+j}, s61, v{VL}
        """)
    a(f"""
    v_add_f32 v{GS}, 1.0, v{GS}
    v_rcp_f32 v{GS}, v{GS}
    s_waitcnt lgkmcnt(0)
    s_barrier
    ds_read_b128 {vr(Q,4)}, v11
    ds_read_b128 {vr(Q+4,4)}, v11 offset:1024
    ds_read_b128 {vr(Q+8,4)}, v1
    ds_read_b128 {vr(Q+12,4)}, v1 offset:1024
    ds_read_b128 {vr(Q+16,4)}, v15
    ds_read_b128 {vr(Q+20,4)}, v15 offset:1024
    s_setprio 3
    s_cmp_lt_u32 s{sW}, 7
    s_cselect_b32 s{SG}, s8, s14
    s_cselect_b32 s{SG+1}, s9, s15
    s_mov_b32 s{SG+2}, {448*896}
    s_cselect_b32 s{sWO}, s{sW}, 0
    s_mul_i32 s{sWO}, s{sWO}, {64*896}
    s_cmp_ge_u32 s{sP}, 7
    s_cselect_b32 s61, 7, 0
    s_sub_u32 s71, s{sP}, s61
    s_cmp_ge_u32 s71, 7
    s_cselect_b32 s61, 7, 0
    s_sub_u32 s71, s71, s61
    s_lshl_b32 s71, s71, 7
    s_add_u32 s{sWO}, s{sWO}, s71
    s_lshl_b32 m0, s{sW}, 13
    s_mov_b32 s{sPASS}, 3
    s_mov_b32 s{sFB}, 0
    s_mov_b32 s{sSPIN}, {SPIN}
    v_mov_b32 v9, v249
    v_add_u32 v10, {7168-1024}, v249
    """)
    a("s_waitcnt lgkmcnt(4)")
    a(mfma(S, K, Q))
    a(mfma(S, K + 4, Q + 4, S))
    a("s_waitcnt lgkmcnt(0)")
    a("s_nop 9")

    def ex(j, r0):
        for r in range(r0, r0 + 4):
            a(f"v_exp_f32 v{S+16*j+r}, v{S+16*j+r}")

    def blk(u, j, mf=True, sm=True, ins=None, wait=None):
        ins = ins or {}
        nj = (j + 1) % 4
        ku = u if j < 3 else (u + 1) % 4
        pj = (j - 1) % 4
        vu = u if j > 0 else (u - 1) % 4
        if wait is not None:
            a(f"s_waitcnt vmcnt({wait})")
        if mf:
            a(mfma(S + 16 * nj, K + 8 * ku, Q + 8 * nj))
        a(ins.get(0, ""))
        ex(j, 0)
        if mf:
            a(mfma(S + 16 * nj, K + 8 * ku + 4, Q + 8 * nj + 4, S + 16 * nj))
        a(ins.get(1, ""))
        ex(j, 4)
        if sm:
            a(smf(O + 16 * pj, V + 8 * vu, S + 16 * pj))
        a(ins.get(2, ""))
        ex(j, 8)
        if sm:
            a(smf(O + 16 * pj, V + 8 * vu + 4, S + 16 * pj + 8))
        a(ins.get(3, ""))
        ex(j, 12)

    def ldK(u):
        return f"""
        s_add_u32 s{sKV}, s{sKV}, 16384
        s_and_b32 s{sKV}, s{sKV}, 0x3ffff
        buffer_load_dwordx4 {vr(K+8*u,4)}, v{VL}, {sr(SKV)}, s{sKV} offen sc1
        buffer_load_dwordx4 {vr(K+8*u+4,4)}, v{VL}, {sr(SKV)}, s{sKV} offen offset:1024 sc1
        """

    def ldV(u):
        return f"""
        buffer_load_dwordx4 {vr(V+8*u,4)}, v{VL}, {sr(SKV)}, s{sKV} offen offset:2048 sc1
        buffer_load_dwordx4 {vr(V+8*u+4,4)}, v{VL}, {sr(SKV)}, s{sKV} offen offset:3072 sc1
        """
    POLL = f"buffer_load_dword v{PD}, v8, {sr(SWS)}, s{sFL} offen sc1"

    blk(0, 0, sm=False)
    blk(0, 1)
    blk(0, 2)
    stamp(5)
    a(f"""
    L_spin1:
    s_waitcnt vmcnt(0)
    v_cmp_ne_u32 vcc, v{TAG}, v{PD}
    s_and_b32 s61, vcc_lo, 0xe
    s_cbranch_scc0 L_go1
    {POLL}
    s_sub_u32 s{sSPIN}, s{sSPIN}, 1
    s_cbranch_scc0 L_spin1
    L_go1:
    """)
    stamp(6)
    for u in (1, 2, 3):
        a(ldK(u))
        a(ldV(u))
    a(POLL)
    blk(0, 3, mf=False)
    a(f"""
    s_and_b32 s61, vcc_lo, 0xfffe
    s_cbranch_scc0 L_go2
    s_mov_b32 s{sSPIN}, {SPIN}
    L_spin2:
    s_waitcnt vmcnt(0)
    v_cmp_ne_u32 vcc, v{TAG}, v{PD}
    s_and_b32 s61, vcc_lo, 0xfffe
    s_cbranch_scc0 L_go2
    {POLL}
    s_sub_u32 s{sSPIN}, s{sSPIN}, 1
    s_cbranch_scc0 L_spin2
    L_go2:
    s_waitcnt vmcnt(9)
    """)
    a(mfma(S, K + 8, Q))
    a(mfma(S, K + 12, Q + 4, S))
    a(ldK(0))
    stamp(7)
    a("s_nop 6")
    a(".p2align 6")
    a("L_loop:")
    WAIT = {1: 9, 2: 10, 3: 10, 0: 9}
    for u in (1, 2, 3, 0):
        for j in range(4):
            ins = {}
            if j == 1:
                ins[2] = ldV((u - 1) % 4)
                if u == 1:
                    ins[2] += f"buffer_load_dwordx4 v9, {sr(SG)}, s{sWO} offen lds\n"
                if u == 2:
                    ins[2] += f"""buffer_load_dwordx4 v10, {sr(SG)}, s{sWO} offen offset:1024 lds
                    s_add_u32 m0, m0, 2048
                    s_add_u32 s{sWO}, s{sWO}, {2*7168}
                    """
            if j == 3:
                ins[2] = ldK(u)
            blk(u, j, ins=ins, wait=WAIT[u] if j == 3 else None)
        if u == 2:
            a(f"""
            s_sub_u32 s{sPASS}, s{sPASS}, 1
            s_cbranch_scc1 L_last
            """)
    a(f"""
    s_setprio 2
    s_cmp_eq_u32 s{sPASS}, 2
    s_cbranch_scc1 L_loop
    s_setprio 1
    s_cmp_eq_u32 s{sPASS}, 1
    s_cbranch_scc1 L_loop
    s_setprio 0
    s_branch L_loop
    L_last:
    """)

    def wr(j):
        return "\n".join(f"ds_write_b128 v{12+j}, {vr(O+16*j+4*r,4)} offset:{r*1024}" for r in range(4)) + "\n"
    blk(3, 0)
    blk(3, 1)
    blk(3, 2, ins={2: wr(0)})
    blk(3, 3, mf=False, ins={3: wr(1)})
    a("s_nop 1")
    a(smf(O + 48, V + 24, S + 48))
    a(smf(O + 48, V + 28, S + 56))
    stamp(8)
    a(f"""
    s_lshl_b32 s61, s{sW}, 12
    s_add_u32 s61, s61, 65536
    v_add_u32 v11, s61, v{VL}
    v_add_u32 v15, 65536, v11
    s_nop 0
    """)
    a(wr(2))
    a("L_red:")
    a("s_waitcnt lgkmcnt(0)")
    a("s_barrier")
    OO = O + 48
    for j in range(3):
        for r in range(4):
            a(f"ds_read_b128 {vr(S+16*j+4*r,4)}, v{15 if j == 2 else 11} offset:{(j%2)*32768+r*1024}")
    a(f"""
    s_lshl_b32 s61, s{sTB}, 2
    s_add_u32 s61, s61, s{sT}
    s_lshl_b32 s61, s61, 5
    s_add_u32 s61, s61, s{sHB}
    s_lshl_b32 s62, s61, 2
    s_add_u32 s62, s62, {FO}
    s_lshl_b32 s61, s61, 11
    s_add_u32 s61, s61, {OF}
    """)
    for j in range(3):
        a(f"s_waitcnt lgkmcnt({8-4*j})")
        for r in range(0, 16, 2):
            a(f"v_pk_add_f32 {vr(OO+r,2)}, {vr(OO+r,2)}, {vr(S+16*j+r,2)}")
    a(f"""
    v_mov_b32 v1, v{OO+12}
    v_mov_b32 v248, v{OO+12}
    v_mov_b32 v250, 0
    s_nop 0
    v_permlane32_swap_b32 v1, v248
    """)
    for r in range(16):
        a(f"v_fma_f32 v250, v{OO+r}, 0, v250")
    a(f"""
    v_cmp_gt_u32 vcc, 32, v2
    v_rcp_f32 v1, v248
    v_add_f32 v250, v250, v248
    v_mul_f32 v1, v1, v{GS}
    v_cndmask_b32 v248, 0, v1, vcc
    """)
    for r in range(12):
        a(f"v_mul_f32 v{OO+r}, v{OO+r}, v1")
    for r in range(12, 16):
        a(f"v_mul_f32 v{OO+r}, v{OO+r}, v248")
    for r in range(8):
        a(f"v_cvt_pk_bf16_f32 v{OO+r}, v{OO+2*r}, v{OO+2*r+1}")
    a(f"""
    buffer_store_dwordx4 {vr(OO,4)}, v{VL}, {sr(SWS)}, s61 offen sc1
    buffer_store_dwordx4 {vr(OO+4,4)}, v{VL}, {sr(SWS)}, s61 offen offset:1024 sc1
    v_mov_b32 v1, {f32(2.0**60)}
    v_cmp_nle_f32 vcc, {f32(2.0**-60)}, v250
    v_cmp_nge_f32 s[22:23], v1, v250
    s_or_b64 vcc, vcc, s[22:23]
    s_cselect_b32 s63, 1, 0
    v_mov_b32 v1, s63
    v_and_b32 v248, 7, v2
    v_lshlrev_b32 v248, 12, v248
    ds_write_b32 v15, v1
    v_add_u32 v248, 131072, v248
    s_waitcnt lgkmcnt(0)
    s_barrier
    ds_read_b32 v1, v248
    s_mov_b32 s{SWB}, s14
    s_mov_b32 s{SWB+1}, s15
    s_mov_b32 s{SWB+2}, {448*896}
    s_mov_b32 s{SWB+3}, 0x00020000
    s_mul_i32 s{sWO}, s{sW}, {56*896}
    s_add_u32 s{sWO}, s{sWO}, s71
    s_add_u32 s{sWO}, s{sWO}, {64*896}
    s_mul_i32 s63, s{sW}, 7168
    s_add_u32 m0, s63, 65536
    s_waitcnt lgkmcnt(0)
    v_cmp_lt_u32 vcc, s{sFB}, v1
    s_cbranch_vccnz L_fallback
    s_cmp_lt_u32 s{sP}, 14
    s_cbranch_scc1 L_proj
    s_waitcnt vmcnt(0)
    s_mov_b64 exec, 1
    buffer_store_dword v{TAG}, off, {sr(SWS)}, s62 sc1
    s_mov_b64 exec, -1
    """)
    stamp(9)
    dump()
    a("s_endpgm")
    a("L_proj:")
    for i in range(7):
        a(f"buffer_load_dwordx4 v{9 + i % 2}, {sr(SWB)}, s{sWO} offen offset:{1024*(i%2)} lds")
        if i % 2:
            a("s_add_u32 m0, m0, 2048")
            a(f"s_add_u32 s{sWO}, s{sWO}, {2*7168}")
    WFR, OFR, ACC = 16, 144, 208
    a(f"""
    s_cmp_ge_u32 s{sP}, 7
    s_cselect_b32 s63, 2, 0
    s_lshl_b32 s61, s{sTB}, 2
    s_add_u32 s63, s63, s61
    s_add_u32 s61, s63, s{sE}
    s_lshl_b32 s61, s61, 2
    s_add_u32 s61, s61, s{sT}                 ; qtile*4 + t
    s_lshl_b32 s{sFL}, s61, 5
    s_add_u32 s{sFL}, s{sFL}, {FO}
    s_lshl_b32 s61, s61, 14
    s_add_u32 s61, s61, {OF}
    v_and_b32 v8, 7, v2
    v_lshlrev_b32 v8, 2, v8
    s_waitcnt vmcnt(7)
    s_mov_b64 exec, 1
    buffer_store_dword v{TAG}, off, {sr(SWS)}, s62 sc1
    s_mov_b64 exec, -1
    {POLL}
    """)
    stamp(9)
    RS = 272
    a(f"""
    v_lshrrev_b32 v12, 5, v2                  ; hf
    v_bfe_u32 v13, v2, 2, 2                   ; r
    v_lshl_add_u32 v13, v12, 2, v13
    v_lshlrev_b32 v13, 7, v13
    v_and_b32 v14, 3, v2
    v_lshl_add_u32 v13, v14, 3, v13
    v_bfe_u32 v14, v2, 4, 1
    v_lshl_add_u32 v13, v14, 5, v13
    v_bfe_u32 v14, v2, 3, 1
    v_lshl_add_u32 v13, v14, 6, v13
    s_mul_i32 s62, s{sT}, {224*128}
    v_add_u32 v10, s62, v13
    v_xor_b32 v11, 64, v10
    s_mov_b32 s{SO}, s18
    s_mov_b32 s{SO+1}, s19
    s_mov_b32 s{SO+2}, {2048*896}
    s_mov_b32 s{SO+3}, 0x00020000
    v_and_b32 v13, 31, v2
    s_lshl_b32 s62, s{sT}, 6
    s_lshl_b32 s22, s{sE}, 5
    s_add_u32 s62, s62, s22
    v_add_u32 v13, s62, v13
    v_mul_u32_u24 v13, {RS}, v13
    v_lshl_add_u32 v12, v12, 4, v13
    v_lshrrev_b32 v14, 3, v0
    v_and_b32 v15, 7, v0
    v_mul_u32_u24 v13, {RS}, v14
    v_lshl_add_u32 v13, v15, 5, v13
    s_lshl_b32 s63, s63, 5
    v_add_u32 v14, s63, v14
    v_mul_u32_u24 v14, 896, v14
    v_lshl_add_u32 v14, v15, 4, v14
    s_waitcnt vmcnt(2)
    s_barrier
    """)
    for i in range(16):
        off = (28 * (i // 2) + 16 * (i % 2)) * 128
        b = WFR + i * 8
        if i >= 3 and i % 2:
            a("s_waitcnt lgkmcnt(4)")
        for ct in range(2):
            a(f"ds_read_b64_tr_b16 {vr(b+4*ct,2)}, v{10+ct} offset:{off}")
            a(f"ds_read_b64_tr_b16 {vr(b+4*ct+2,2)}, v{10+ct} offset:{off+1024}")
    a(f"""
    s_mov_b32 s{sSPIN}, {SPIN}
    L_spin3:
    s_waitcnt vmcnt(0)
    v_cmp_ne_u32 vcc, v{TAG}, v{PD}
    s_cbranch_vccz L_go3
    {POLL}
    s_sub_u32 s{sSPIN}, s{sSPIN}, 1
    s_cbranch_scc0 L_spin3
    L_go3:
    """)
    stamp(10)
    for i in range(16):
        if i % 4 == 0 and i:
            a("s_add_u32 s61, s61, 4096")
        a(f"buffer_load_dwordx4 {vr(OFR+4*i,4)}, v{VL}, {sr(SWS)}, s61 offen offset:{(i%4)*1024} sc1")
    a("s_waitcnt lgkmcnt(0)")
    a("s_barrier")
    for i in range(16):
        a(f"s_waitcnt vmcnt({15-i})")
        b = WFR + i * 8
        for ct in range(2):
            a(mfma(ACC + 16 * ct, b + 4 * ct, OFR + 4 * i, None if i == 0 else ACC + 16 * ct))
    a("s_nop 10")
    for ct in range(2):
        for q in range(4):
            a(f"ds_write_b128 v12, {vr(ACC+16*ct+4*q,4)} offset:{ct*128+q*32}")
    a("s_waitcnt lgkmcnt(0)")
    a("s_barrier")
    for q in range(4):
        for h in range(2):
            a(f"ds_read_b128 {vr(16+8*q+4*h,4)}, v13 offset:{q*64*RS+16*h}")
    a(f"""
    s_or_b32 s61, s2, s{sW}
    s_cbranch_scc1 L_noepoch
    s_mov_b32 s61, {GW}
    s_mov_b64 exec, 1
    buffer_store_dword v{TAG}, off, {sr(SWS)}, s61 sc1
    s_mov_b64 exec, -1
    L_noepoch:
    """)
    for q in range(1, 4):
        a(f"s_waitcnt lgkmcnt({6-2*q})")
        for r in range(0, 8, 2):
            a(f"v_pk_add_f32 {vr(16+r,2)}, {vr(16+r,2)}, {vr(16+8*q+r,2)}")
    for r in range(4):
        a(f"v_cvt_pk_bf16_f32 v{16+r}, v{16+2*r}, v{16+2*r+1}")
    a(f"buffer_store_dwordx4 v[16:19], v14, {sr(SO)}, s71 offen")
    dump()
    a("L_end:")
    a("s_endpgm")

    M = 240
    a("L_fallback:")
    a("s_waitcnt vmcnt(0)")
    a(f"s_mov_b32 s{sFB}, 1")
    for j in range(4):
        a(f"v_mov_b32 v{M+j}, 0xff800000")
    a(f"s_mov_b32 s{sPASS}, 16")
    a("L_f1:")
    a(ldK(0))
    a("s_waitcnt vmcnt(0)")
    for j in range(4):
        a(mfma(S + 16 * j, K, Q + 8 * j))
        a(mfma(S + 16 * j, K + 4, Q + 8 * j + 4, S + 16 * j))
    a("s_nop 15")
    for j in range(4):
        for r in range(0, 16, 2):
            a(f"v_max3_f32 v{M+j}, v{M+j}, v{S+16*j+r}, v{S+16*j+r+1}")
    a(f"""
    s_sub_u32 s{sPASS}, s{sPASS}, 1
    s_cmp_lg_u32 s{sPASS}, 0
    s_cbranch_scc1 L_f1
    v_lshlrev_b32 v1, 2, v2
    s_lshl_b32 s63, s{sE}, 2
    """)
    for j in range(4):
        a(f"""
        s_add_u32 s61, s{sT}, {j+1}
        s_and_b32 s61, s61, 3
        s_add_u32 s61, s61, s63
        s_lshl_b32 s61, s61, 10
        s_add_u32 s61, s61, 65536
        v_add_u32 v{244+j}, s61, v1
        """)
    a(f"s_lshl_b32 s61, s{sT}, 8")
    for j in range(4):
        a(f"v_add_u32 v1, s61, v{244+j}")
        a(f"ds_write_b32 v1, v{M+j}")
    a("s_waitcnt lgkmcnt(0)")
    a("s_barrier")
    for j in range(4):
        for q in range(4):
            a(f"ds_read_b32 v{S+4*j+q}, v{244+j} offset:{256*q}")
        a("s_waitcnt lgkmcnt(0)")
    for j in range(4):
        a(f"""
        v_max3_f32 v{M+j}, v{S+4*j}, v{S+4*j+1}, v{S+4*j+2}
        v_max_f32 v{M+j}, v{M+j}, v{S+4*j+3}
        v_mov_b32 v1, v{M+j}
        s_nop 1
        v_permlane32_swap_b32 v1, v{M+j}
        s_nop 1
        v_max_f32 v{M+j}, v{M+j}, v1
        """)
    for i in range(64):
        a(f"v_mov_b32 v{O+i}, 0")
    a(f"s_mov_b32 s{sPASS}, 16")
    a("s_barrier")
    a("L_f2:")
    a(ldK(0))
    a(ldV(0))
    a("s_waitcnt vmcnt(0)")
    for j in range(4):
        a(mfma(S + 16 * j, K, Q + 8 * j))
        a(mfma(S + 16 * j, K + 4, Q + 8 * j + 4, S + 16 * j))
    a("s_nop 15")
    for j in range(4):
        for r in range(16):
            a(f"v_sub_f32 v{S+16*j+r}, v{S+16*j+r}, v{M+j}")
        for r in range(16):
            a(f"v_exp_f32 v{S+16*j+r}, v{S+16*j+r}")
    a("s_nop 3")
    for j in range(4):
        a(smf(O + 16 * j, V, S + 16 * j))
        a(smf(O + 16 * j, V + 4, S + 16 * j + 8))
    a(f"""
    s_nop 15
    s_sub_u32 s{sPASS}, s{sPASS}, 1
    s_cmp_lg_u32 s{sPASS}, 0
    s_cbranch_scc1 L_f2
    """)
    for j in range(3):
        a(wr(j))
    a("s_branch L_red")

    head = "; generated by gen2.py (hand-written generator)\n; @launch grid=(256,1,1) block=(512,1,1) lds=163840\n"
    return head + a.text() + f""".section .rodata,"a"
.p2align 6
.amdhsa_kernel {k}
  .amdhsa_next_free_vgpr 256
  .amdhsa_next_free_sgpr 102
  .amdhsa_accum_offset 256
  .amdhsa_group_segment_fixed_size 0
  .amdhsa_kernarg_size 80
  .amdhsa_user_sgpr_count 2
  .amdhsa_user_sgpr_kernarg_segment_ptr 1
  .amdhsa_system_sgpr_workgroup_id_x 1
.end_amdhsa_kernel
"""


if __name__ == "__main__":
    opt = dict(x.split("=", 1) for x in sys.argv[2:])
    path = sys.argv[1] if len(sys.argv) > 1 else f"cdna_kernels/{NAME}.s"
    open(path, "w").write(gen(opt))
```

```python
import sys, math
from gen import A, vr, f32, mfma, NAME

KVF = 0
OF = 8 << 20
FK = 12 << 20
FO = FK + 65536
GW = FK + 131072
WS_BYTES = 13 << 20
STAMP = 20 << 20
TAGC = 0x9E3779B9
SPIN = 1 << 16

SX, SW, SKV, SWS, SG, SWB, SO = 24, 28, 32, 36, 40, 44, 48
sW, sT, sE, sP, sTB, sHB, sKC, sM0, sCOL = 52, 53, 54, 55, 56, 57, 58, 59, 60
sKV, sWO, sPASS, sFB, sSPIN, sFL = 64, 65, 66, 67, 69, 70
O, S, Q, K, V = 16, 80, 144, 176, 208
XF, WF, AK, AV, AQ, Z = 16, 128, 184, 216, 224, 240
VL, IDX, TAG, GS, PD = 3, 4, 5, 6, 7


def sr(a):
    return f"s[{a}:{a+3}]"


def gen(opt):
    a = A()
    ST = opt.get("st", "sc1")
    nst = [0]

    def stamp(i):
        if opt.get("stamp"):
            a(f"s_memrealtime s[{72+2*i}:{73+2*i}]")

    def dump():
        if not opt.get("stamp"):
            return
        stamp(11)
        if opt.get("stamp") == "2":
            nst[0] += 1
            a(f"""
            s_memtime s[98:99]
            s_load_dwordx2 s[96:97], s[0:1], 64
            s_waitcnt lgkmcnt(0)
            s_sub_u32 s100, s98, s100
            s_cmp_lg_u32 s2, {opt.get("wg", "0")}
            s_cbranch_scc1 L_nd{nst[0]}
            s_cmp_lg_u32 s{sW}, 0
            s_cbranch_scc1 L_nd{nst[0]}
            s_mov_b32 s98, 256
            s_mov_b32 s99, 0x00020000
            """)
            for i in range(1, 12):
                a(f"s_sub_u32 s{72+2*i}, s{72+2*i}, s72")
            a("s_mov_b32 s72, s100")
            for q in range(3):
                for i in range(4):
                    a(f"v_mov_b32 v{240+4*q+i}, s{72+2*(4*q+i)}")
                a(f"buffer_store_dwordx4 {vr(240+4*q,4)}, off, s[96:99], 0 offset:{16*q}")
            a(f"L_nd{nst[0]}:")
            return
        a(f"""
        s_mov_b32 s96, s20
        s_mov_b32 s97, s21
        s_mov_b32 s98, {32 << 20}
        s_mov_b32 s99, 0x00020000
        s_lshl_b32 s100, s2, 3
        s_add_u32 s100, s100, s{sW}
        s_lshl_b32 s100, s100, 6
        s_add_u32 s100, s100, {STAMP}
        s_waitcnt lgkmcnt(0)
        """)
        for q in range(3):
            for i in range(4):
                a(f"v_mov_b32 v{240+4*q+i}, s{72+2*(4*q+i)}")
            a(f"buffer_store_dwordx4 {vr(240+4*q,4)}, off, s[96:99], s100 offset:{16*q}")

    def smf(o, v, s):
        return f"v_smfmac_f32_32x32x32_bf16 {vr(o,16)}, {vr(v,4)}, {vr(s,8)}, v{IDX}"

    k = NAME + "_kernel"
    a('.amdgcn_target "amdgcn-amd-amdhsa--gfx950"')
    a(".text")
    a(f".globl {k}")
    a(".p2align 8")
    a(f".type {k},@function")
    a(f"{k}:")
    if opt.get("stamp"):
        for i in range(74, 96):
            a(f"s_mov_b32 s{i}, 0")
    stamp(0)
    if opt.get("stamp") == "2":
        a("s_memtime s[100:101]")
    a(f"""
    s_cmp_ge_u32 s2, 256
    s_cbranch_scc1 L_end
    s_load_dwordx16 s[4:19], s[0:1], 0
    s_load_dwordx2 s[20:21], s[0:1], 72
    v_lshrrev_b32 v1, 6, v0
    v_and_b32 v2, 63, v0                      ; lane
    s_and_b32 s22, s2, 7
    s_lshr_b32 s23, s2, 3
    v_readfirstlane_b32 s{sW}, v1
    s_lshl_b32 s{sP}, s22, 1
    s_and_b32 s22, s23, 1
    s_add_u32 s{sP}, s{sP}, s22
    s_lshr_b32 s{sTB}, s23, 1
    s_and_b32 s22, s{sP}, 7
    s_mul_i32 s{sKC}, s22, 3
    s_add_u32 s{sKC}, s{sKC}, s{sTB}
    s_mul_i32 s23, s{sKC}, 9363
    s_lshr_b32 s23, s23, 16
    s_mul_i32 s23, s23, 7
    s_sub_u32 s{sKC}, s{sKC}, s23
    s_mul_i32 s{sCOL}, s22, 112
    s_add_u32 s{sCOL}, s{sCOL}, 896
    v_lshrrev_b32 v11, 3, v2                  ; l/8
    v_and_b32 v12, 7, v2
    v_lshrrev_b32 v13, 4, v2                  ; l/16
    v_xor_b32 v14, v12, v13
    s_lshl_b32 s22, s{sTB}, 7
    s_lshl_b32 s23, s{sW}, 4
    s_add_u32 s22, s22, s23
    v_add_u32 v1, s22, v11
    v_mul_u32_u24 v1, 896, v1
    v_lshl_add_u32 v8, v14, 4, v1             ; x rows 16w..16w+7
    v_xor_b32 v14, 4, v14
    v_lshl_add_u32 v9, v14, 4, v1
    v_add_u32 v9, {7168-1024}, v9
    v_and_b32 v13, 1, v13
    v_lshlrev_b32 v13, 2, v13
    v_xor_b32 v248, v12, v13
    s_lshl_b32 s23, s{sW}, 3
    v_add_u32 v1, s23, v11
    v_mul_u32_u24 v1, 2688, v1
    v_lshl_add_u32 v10, v248, 4, v1
    v_cmp_eq_u32 vcc, 7, v248
    v_mov_b32 v1, 0x40000000
    s_lshl_b32 s{sM0}, s{sW}, 12
    v_cndmask_b32 v10, v10, v1, vcc
    s_cmp_lt_u32 s{sP}, 8
    s_waitcnt lgkmcnt(0)
    s_mov_b32 s{SX}, s4
    s_mov_b32 s{SX+1}, s5
    s_mov_b32 s{SX+2}, {2048*896}
    s_mov_b32 s{SX+3}, 0x00020000
    s_cselect_b32 s{SW}, s6, s12
    s_cselect_b32 s{SW+1}, s7, s13
    s_mov_b32 s{SW+2}, {448*2688}
    s_mov_b32 s{SW+3}, 0x00020000
    s_add_u32 s3, s{sKC}, s{sW}
    """)

    def nextkc():
        a(f"""
        s_add_u32 s{sKC}, s{sKC}, 1
        s_cmp_eq_u32 s{sKC}, 7
        s_cselect_b32 s{sKC}, 0, s{sKC}
        """)

    def dma(slot):
        a(f"""
        s_add_u32 m0, s{sM0}, {slot*32768}
        s_lshl_b32 s61, s{sKC}, 7
        s_mul_i32 s62, s{sKC}, 172032
        buffer_load_dwordx4 v8, {sr(SX)}, s61 offen lds
        s_add_u32 s62, s62, s{sCOL}
        buffer_load_dwordx4 v9, {sr(SX)}, s61 offen offset:1024 lds
        s_add_u32 m0, m0, 2048
        s_sub_u32 s63, s62, 128
        buffer_load_dwordx4 v10, {sr(SW)}, s62 offen lds
        s_add_u32 s{sKC}, s{sKC}, 1
        s_cmp_eq_u32 s{sKC}, 7
        buffer_load_dwordx4 v10, {sr(SW)}, s63 offen offset:1024 lds
        s_cselect_b32 s{sKC}, 0, s{sKC}
        """)

    def dmaq(c0, c1):
        a(f"""
        s_mov_b32 exec_lo, 0xf7f77f7f
        s_mov_b32 exec_hi, 0xf7f77f7f
        s_lshl_b32 s61, s{sW}, 10
        """)
        for c in range(c0, c1):
            a(f"""
            s_mul_i32 s62, s{sKC}, 172032
            s_add_u32 m0, s61, {65536 + c*8192}
            s_add_u32 s62, s62, s{sCOL}
            s_add_u32 s{sKC}, s{sKC}, 1
            s_cmp_eq_u32 s{sKC}, 7
            buffer_load_dwordx4 v10, {sr(SW)}, s62 offen lds
            s_cselect_b32 s{sKC}, 0, s{sKC}
            """)
        a("s_mov_b64 exec, -1")

    for s in range(5):
        dma(s)
    a(f"""
    s_mov_b32 s{SWS}, s20
    s_mov_b32 s{SWS+1}, s21
    s_mov_b32 s{SWS+2}, {WS_BYTES}
    s_mov_b32 s{SWS+3}, 0x00020000
    s_mov_b32 s{SG}, s16
    s_mov_b32 s{SG+1}, s17
    s_mov_b32 s{SG+2}, 896
    s_mov_b32 s{SG+3}, 0x00020000
    s_mov_b32 s61, {GW}
    s_sub_u32 s62, s3, 7
    s_cselect_b32 s3, s3, s62
    s_lshl_b32 s3, s3, 7
    v_lshlrev_b32 v1, 1, v2
    buffer_load_dword v{TAG}, off, {sr(SWS)}, s61 sc1
    buffer_load_ushort v244, v1, {sr(SG)}, s3 offen
    s_and_b32 s{sT}, s{sW}, 3
    s_lshr_b32 s{sE}, s{sW}, 2
    s_lshl_b32 s{sHB}, s{sP}, 1
    s_add_u32 s{sHB}, s{sHB}, s{sE}
    s_lshl_b32 s61, s{sHB}, 18
    s_add_u32 s{SKV}, s20, s61
    s_addc_u32 s{SKV+1}, s21, 0
    s_mov_b32 s{SKV+2}, 262144
    s_mov_b32 s{SKV+3}, 0x00020000
    s_lshl_b32 s{sKV}, s{sTB}, 2
    s_add_u32 s{sKV}, s{sKV}, s{sT}
    s_lshl_b32 s{sKV}, s{sKV}, 12
    s_lshl_b32 s{sFL}, s{sHB}, 2
    s_add_u32 s{sFL}, s{sFL}, s{sT}
    s_lshl_b32 s{sFL}, s{sFL}, 7
    s_add_u32 s{sFL}, s{sFL}, {FK}
    v_lshlrev_b32 v{VL}, 4, v2
    v_mov_b32 v{IDX}, 0xdddddddd
    v_mul_u32_u24 v249, 896, v11
    v_lshl_add_u32 v249, v248, 4, v249
    v_and_b32 v1, 31, v2                      ; n
    v_lshrrev_b32 v250, 5, v2                 ; hf
    v_bfe_u32 v12, v2, 1, 3
    v_xor_b32 v12, v250, v12
    v_and_b32 v13, 15, v2
    v_lshlrev_b32 v13, 7, v13
    v_lshl_add_u32 v12, v12, 4, v13
    v_bfe_u32 v13, v2, 4, 1
    v_lshl_add_u32 v12, v13, 12, v12
    s_lshl_b32 s61, s{sT}, 13
    v_add_u32 v11, s61, v12
    v_xor_b32 v12, 32, v11
    v_xor_b32 v14, 96, v11
    v_and_b32 v15, 3, v2
    v_lshlrev_b32 v15, 3, v15
    v_lshl_add_u32 v15, v13, 5, v15           ; 32*b4 + 8*c4
    v_xor_b32 v13, 64, v11
    s_mul_i32 s61, s{sE}, 56
    s_lshl_b32 s62, s{sE}, 3
    s_sub_u32 s62, 120, s62
    v_cmp_eq_u32 vcc, 56, v15
    v_add_u32 v15, s61, v15
    v_mov_b32 v247, s62
    v_cndmask_b32 v15, v15, v247, vcc
    v_bfe_u32 v247, v2, 3, 1
    v_lshlrev_b32 v247, 6, v247
    v_xor_b32 v15, v15, v247
    v_bfe_u32 v247, v2, 2, 2
    v_lshl_add_u32 v15, v247, 7, v15
    v_lshl_add_u32 v246, v250, 10, v15
    v_add_u32 v246, 65536, v246               ; Wq
    v_lshl_add_u32 v15, v250, 12, v15
    v_add_u32 v15, 2048, v15
    v_bfe_u32 v247, v2, 1, 1
    v_lshlrev_b32 v247, 6, v247
    v_xor_b32 v247, 112, v247
    v_lshl_add_u32 v247, v0, 7, v247
    v_cmp_eq_u32 vcc, 28, v1
    v_add_u32 v247, 65536, v247
    v_mov_b32 v245, 0
    v_cndmask_b32 v{AV}, 0, 1.0, vcc
    """)
    for i in range(1, 16):
        a(f"v_mov_b32 v{AV+i}, v{AV}")
    for i in range(4):
        a(f"v_mov_b32 v{Z+i}, 0")

    def reads(c, st):
        off = (c % 5 % 2) * 32768
        a(f"ds_read_b128 {vr(XF+16*c+4*st,4)}, v{11+st} offset:{off}")
        for m in range(2):
            b = WF + 8 * st + 4 * m
            a(f"ds_read_b64_tr_b16 {vr(b,2)}, v15 offset:{off+st*8192+m*1024}")
            a(f"ds_read_b64_tr_b16 {vr(b+2,2)}, v15 offset:{off+st*8192+m*1024+512}")

    def mm(c, st):
        x = XF + 16 * c + 4 * st
        a(mfma(AK, WF + 8 * st, x, None if (c == 0 and st == 0) else AK))
        a(mfma(AV, x, WF + 8 * st + 4, AV))

    waits = [18, 14, 14, 14, 14, 11, 7]
    for c in range(7):
        a(f"s_waitcnt vmcnt({waits[c]})")
        a("s_barrier")
        if c == 0:
            stamp(1)
        reads(c, 0)
        reads(c, 1)
        if c in (1, 2):
            dma(c - 1)
        if c == 3:
            a(f"s_sub_u32 s{sCOL}, s{sCOL}, 896")
            dmaq(0, 4)
        if c == 4:
            dmaq(4, 7)
        a("s_waitcnt lgkmcnt(5)")
        mm(c, 0)
        reads(c, 2)
        a("s_waitcnt lgkmcnt(5)")
        mm(c, 1)
        reads(c, 3)
        if c == 5:
            a("ds_write2_b64 v247, v[244:245], v[244:245] offset0:0 offset1:1")
            a(f"v_add_u32 v{TAG}, {TAGC}, v{TAG}")
            a("s_waitcnt lgkmcnt(6)")
        else:
            a("s_waitcnt lgkmcnt(5)")
        mm(c, 2)
        if c in (1, 3, 4):
            d = 65536 if c != 4 else -131072
            for r in range(11, 16):
                a(f"v_add_u32 v{r}, {d & 0xffffffff}, v{r}")
        a("s_waitcnt lgkmcnt(0)")
        mm(c, 3)
    stamp(2)
    a(f"""
    s_add_u32 s61, s{sTB}, s{sTB}
    s_add_u32 s61, s61, s61
    s_add_u32 s61, s61, s{sFL}
    v_add_u32 v8, s{sTB}, v2
    v_and_b32 v8, 15, v8
    v_lshlrev_b32 v8, 2, v8
    s_nop 4
    """)
    for r in range(8):
        a(f"v_cvt_pk_bf16_f32 v{K+r}, v{AK+2*r}, v{AK+2*r+1}")
    a(f"buffer_store_dwordx4 {vr(K,4)}, v{VL}, {sr(SKV)}, s{sKV} offen {ST}")
    a(f"buffer_store_dwordx4 {vr(K+4,4)}, v{VL}, {sr(SKV)}, s{sKV} offen offset:1024 {ST}")
    for r in range(8):
        a(f"v_cvt_pk_bf16_f32 v{V+r}, v{AV+2*r}, v{AV+2*r+1}")
    a("s_nop 0")
    for x in (0, 1, 4, 5):
        a(f"v_permlane32_swap_b32 v{V+x}, v{V+x+2}")
    a(f"buffer_store_dwordx4 {vr(V,4)}, v{VL}, {sr(SKV)}, s{sKV} offen offset:2048 {ST}")
    a(f"buffer_store_dwordx4 {vr(V+4,4)}, v{VL}, {sr(SKV)}, s{sKV} offen offset:3072 {ST}")
    a("s_waitcnt vmcnt(4)")
    a("s_barrier")
    D = 6

    def rq(st):
        b = WF + 4 * (st % 8)
        a(f"ds_read_b64_tr_b16 {vr(b,2)}, v246 offset:{st*2048}")
        a(f"ds_read_b64_tr_b16 {vr(b+2,2)}, v246 offset:{st*2048+512}")
    for st in range(D):
        rq(st)
    for st in range(28):
        if st + D < 28:
            rq(st + D)
        a(f"s_waitcnt lgkmcnt({2*min(D, 27-st)})")
        a(mfma(AQ, WF + 4 * (st % 8), XF + 4 * st, None if st == 0 else AQ))
    for j in range(4):
        a(f"v_mfma_f32_32x32x16_bf16 {vr(O+16*j,16)}, {vr(Z,4)}, {vr(Z,4)}, 0")
    stamp(3)
    a(f"""
    s_waitcnt vmcnt(0)
    s_mov_b64 exec, 1
    buffer_store_dword v{TAG}, off, {sr(SWS)}, s61 sc1
    s_mov_b64 exec, -1
    buffer_load_dword v{PD}, v8, {sr(SWS)}, s{sFL} offen sc1
    s_mov_b32 s62, {f32(math.log2(math.e) / math.sqrt(28.0))}
    s_lshl_b32 s61, s{sW}, 11
    s_add_u32 s61, s61, 131072
    v_add_u32 v11, s61, v{VL}
    v_mov_b32 v1, v{AQ+12}
    v_mov_b32 v{GS}, v{AQ+12}
    v_cmp_gt_u32 vcc, 32, v2
    """)
    stamp(4)
    for r in range(16):
        a(f"v_mul_f32 v{AQ+r}, s62, v{AQ+r}")
    a(f"v_permlane32_swap_b32 v1, v{GS}")
    for r in range(8):
        a(f"v_cvt_pk_bf16_f32 v{Q+24+r}, v{AQ+2*r}, v{AQ+2*r+1}")
    a(f"""
    v_cndmask_b32 v{Q+30}, 0, v{Q+30}, vcc
    ds_write_b128 v11, {vr(Q+24,4)}
    ds_write_b128 v11, {vr(Q+28,4)} offset:1024
    s_cmp_lt_u32 s{sP}, 8
    s_cselect_b32 s62, {f32(-math.log2(math.e))}, s62
    s_cbranch_scc1 L_gs
    s_mov_b32 s62, {f32(math.log2(math.e))}
    L_gs:
    v_mul_f32 v{GS}, s62, v{GS}
    v_exp_f32 v{GS}, v{GS}
    s_lshl_b32 s63, s{sE}, 2
    """)
    for j in range(3):
        a(f"""
        s_add_u32 s61, s{sT}, {j+1}
        s_and_b32 s61, s61, 3
        s_add_u32 s61, s61, s63
        s_lshl_b32 s62, s61, 11
        s_lshl_b32 s61, s61, 12
        s_add_u32 s62, s62, 131072
        s_add_u32 s61, s61, {65536 + j*32768}
        v_add_u32 v{(11, 1, 15)[j]}, s62, v{VL}
        v_add_u32 v{12+j}, s61, v{VL}
        """)
    a(f"""
    v_add_f32 v{GS}, 1.0, v{GS}
    v_rcp_f32 v{GS}, v{GS}
    s_waitcnt lgkmcnt(0)
    s_barrier
    ds_read_b128 {vr(Q,4)}, v11
    ds_read_b128 {vr(Q+4,4)}, v11 offset:1024
    ds_read_b128 {vr(Q+8,4)}, v1
    ds_read_b128 {vr(Q+12,4)}, v1 offset:1024
    ds_read_b128 {vr(Q+16,4)}, v15
    ds_read_b128 {vr(Q+20,4)}, v15 offset:1024
    s_setprio 3
    s_cmp_lt_u32 s{sW}, 7
    s_cselect_b32 s{SG}, s8, s14
    s_cselect_b32 s{SG+1}, s9, s15
    s_mov_b32 s{SG+2}, {448*896}
    s_cselect_b32 s{sWO}, s{sW}, 0
    s_mul_i32 s{sWO}, s{sWO}, {64*896}
    s_cmp_ge_u32 s{sP}, 7
    s_cselect_b32 s61, 7, 0
    s_sub_u32 s71, s{sP}, s61
    s_cmp_ge_u32 s71, 7
    s_cselect_b32 s61, 7, 0
    s_sub_u32 s71, s71, s61
    s_lshl_b32 s71, s71, 7
    s_add_u32 s{sWO}, s{sWO}, s71
    s_lshl_b32 m0, s{sW}, 13
    s_mov_b32 s{sPASS}, 3
    s_mov_b32 s{sFB}, 0
    s_mov_b32 s{sSPIN}, {SPIN}
    v_mov_b32 v9, v249
    v_add_u32 v10, {7168-1024}, v249
    """)
    a("s_waitcnt lgkmcnt(4)")
    a(mfma(S, K, Q))
    a(mfma(S, K + 4, Q + 4, S))
    a("s_waitcnt lgkmcnt(0)")
    a("s_nop 9")

    def ex(j, r0):
        for r in range(r0, r0 + 4):
            a(f"v_exp_f32 v{S+16*j+r}, v{S+16*j+r}")

    def blk(u, j, mf=True, sm=True, ins=None, wait=None):
        ins = ins or {}
        nj = (j + 1) % 4
        ku = u if j < 3 else (u + 1) % 4
        pj = (j - 1) % 4
        vu = u if j > 0 else (u - 1) % 4
        if wait is not None:
            a(f"s_waitcnt vmcnt({wait})")
        if mf:
            a(mfma(S + 16 * nj, K + 8 * ku, Q + 8 * nj))
        a(ins.get(0, ""))
        ex(j, 0)
        if mf:
            a(mfma(S + 16 * nj, K + 8 * ku + 4, Q + 8 * nj + 4, S + 16 * nj))
        a(ins.get(1, ""))
        ex(j, 4)
        if sm:
            a(smf(O + 16 * pj, V + 8 * vu, S + 16 * pj))
        a(ins.get(2, ""))
        ex(j, 8)
        if sm:
            a(smf(O + 16 * pj, V + 8 * vu + 4, S + 16 * pj + 8))
        a(ins.get(3, ""))
        ex(j, 12)

    def ldK(u):
        return f"""
        s_add_u32 s{sKV}, s{sKV}, 16384
        s_and_b32 s{sKV}, s{sKV}, 0x3ffff
        buffer_load_dwordx4 {vr(K+8*u,4)}, v{VL}, {sr(SKV)}, s{sKV} offen sc1
        buffer_load_dwordx4 {vr(K+8*u+4,4)}, v{VL}, {sr(SKV)}, s{sKV} offen offset:1024 sc1
        """

    def ldV(u):
        return f"""
        buffer_load_dwordx4 {vr(V+8*u,4)}, v{VL}, {sr(SKV)}, s{sKV} offen offset:2048 sc1
        buffer_load_dwordx4 {vr(V+8*u+4,4)}, v{VL}, {sr(SKV)}, s{sKV} offen offset:3072 sc1
        """
    POLL = f"buffer_load_dword v{PD}, v8, {sr(SWS)}, s{sFL} offen sc1"

    blk(0, 0, sm=False)
    blk(0, 1)
    blk(0, 2)
    stamp(5)
    a(f"""
    L_spin1:
    s_waitcnt vmcnt(0)
    v_cmp_ne_u32 vcc, v{TAG}, v{PD}
    s_and_b32 s61, vcc_lo, 0xe
    s_cbranch_scc0 L_go1
    {POLL}
    s_sub_u32 s{sSPIN}, s{sSPIN}, 1
    s_cbranch_scc0 L_spin1
    L_go1:
    """)
    stamp(6)
    for u in (1, 2, 3):
        a(ldK(u))
        a(ldV(u))
    a(POLL)
    blk(0, 3, mf=False)
    a(f"""
    s_and_b32 s61, vcc_lo, 0xfffe
    s_cbranch_scc0 L_go2
    s_mov_b32 s{sSPIN}, {SPIN}
    L_spin2:
    s_waitcnt vmcnt(0)
    v_cmp_ne_u32 vcc, v{TAG}, v{PD}
    s_and_b32 s61, vcc_lo, 0xfffe
    s_cbranch_scc0 L_go2
    {POLL}
    s_sub_u32 s{sSPIN}, s{sSPIN}, 1
    s_cbranch_scc0 L_spin2
    L_go2:
    s_waitcnt vmcnt(9)
    """)
    a(mfma(S, K + 8, Q))
    a(mfma(S, K + 12, Q + 4, S))
    a(ldK(0))
    stamp(7)
    a("s_nop 6")
    a(".p2align 6")
    a("L_loop:")
    WAIT = {1: 9, 2: 10, 3: 10, 0: 9}
    for u in (1, 2, 3, 0):
        for j in range(4):
            ins = {}
            if j == 1:
                ins[2] = ldV((u - 1) % 4)
                if u == 1:
                    ins[2] += f"buffer_load_dwordx4 v9, {sr(SG)}, s{sWO} offen lds\n"
                if u == 2:
                    ins[2] += f"""buffer_load_dwordx4 v10, {sr(SG)}, s{sWO} offen offset:1024 lds
                    s_add_u32 m0, m0, 2048
                    s_add_u32 s{sWO}, s{sWO}, {2*7168}
                    """
            if j == 3:
                ins[2] = ldK(u)
            blk(u, j, ins=ins, wait=WAIT[u] if j == 3 else None)
        if u == 2:
            a(f"""
            s_sub_u32 s{sPASS}, s{sPASS}, 1
            s_cbranch_scc1 L_last
            """)
    a(f"""
    s_setprio 2
    s_cmp_eq_u32 s{sPASS}, 2
    s_cbranch_scc1 L_loop
    s_setprio 1
    s_cmp_eq_u32 s{sPASS}, 1
    s_cbranch_scc1 L_loop
    s_setprio 0
    s_branch L_loop
    L_last:
    """)

    def wr(j):
        return "\n".join(f"ds_write_b128 v{12+j}, {vr(O+16*j+4*r,4)} offset:{r*1024}" for r in range(4)) + "\n"
    blk(3, 0)
    blk(3, 1)
    blk(3, 2, ins={2: wr(0)})
    blk(3, 3, mf=False, ins={3: wr(1)})
    a("s_nop 1")
    a(smf(O + 48, V + 24, S + 48))
    a(smf(O + 48, V + 28, S + 56))
    stamp(8)
    a(f"""
    s_lshl_b32 s61, s{sW}, 12
    s_add_u32 s61, s61, 65536
    v_add_u32 v11, s61, v{VL}
    v_add_u32 v15, 65536, v11
    s_nop 0
    """)
    a(wr(2))
    a("L_red:")
    a("s_waitcnt lgkmcnt(0)")
    a("s_barrier")
    OO = O + 48
    for j in range(3):
        for r in range(4):
            a(f"ds_read_b128 {vr(S+16*j+4*r,4)}, v{15 if j == 2 else 11} offset:{(j%2)*32768+r*1024}")
    a(f"""
    s_lshl_b32 s61, s{sTB}, 2
    s_add_u32 s61, s61, s{sT}
    s_lshl_b32 s61, s61, 5
    s_add_u32 s61, s61, s{sHB}
    s_lshl_b32 s62, s61, 2
    s_add_u32 s62, s62, {FO}
    s_lshl_b32 s61, s61, 11
    s_add_u32 s61, s61, {OF}
    """)
    for j in range(3):
        a(f"s_waitcnt lgkmcnt({8-4*j})")
        for r in range(0, 16, 2):
            a(f"v_pk_add_f32 {vr(OO+r,2)}, {vr(OO+r,2)}, {vr(S+16*j+r,2)}")
    a(f"""
    v_mov_b32 v1, v{OO+12}
    v_mov_b32 v248, v{OO+12}
    v_mov_b32 v250, 0
    s_nop 0
    v_permlane32_swap_b32 v1, v248
    """)
    for r in range(16):
        a(f"v_fma_f32 v250, v{OO+r}, 0, v250")
    a(f"""
    v_cmp_gt_u32 vcc, 32, v2
    v_rcp_f32 v1, v248
    v_add_f32 v250, v250, v248
    v_mul_f32 v1, v1, v{GS}
    v_cndmask_b32 v248, 0, v1, vcc
    """)
    for r in range(12):
        a(f"v_mul_f32 v{OO+r}, v{OO+r}, v1")
    for r in range(12, 16):
        a(f"v_mul_f32 v{OO+r}, v{OO+r}, v248")
    for r in range(8):
        a(f"v_cvt_pk_bf16_f32 v{OO+r}, v{OO+2*r}, v{OO+2*r+1}")
    a(f"""
    buffer_store_dwordx4 {vr(OO,4)}, v{VL}, {sr(SWS)}, s61 offen sc1
    buffer_store_dwordx4 {vr(OO+4,4)}, v{VL}, {sr(SWS)}, s61 offen offset:1024 sc1
    v_mov_b32 v1, {f32(2.0**60)}
    v_cmp_nle_f32 vcc, {f32(2.0**-60)}, v250
    v_cmp_nge_f32 s[22:23], v1, v250
    s_or_b64 vcc, vcc, s[22:23]
    s_cselect_b32 s63, 1, 0
    v_mov_b32 v1, s63
    v_and_b32 v248, 7, v2
    v_lshlrev_b32 v248, 12, v248
    ds_write_b32 v15, v1
    v_add_u32 v248, 131072, v248
    s_waitcnt lgkmcnt(0)
    s_barrier
    ds_read_b32 v1, v248
    s_mov_b32 s{SWB}, s14
    s_mov_b32 s{SWB+1}, s15
    s_mov_b32 s{SWB+2}, {448*896}
    s_mov_b32 s{SWB+3}, 0x00020000
    s_mul_i32 s{sWO}, s{sW}, {56*896}
    s_add_u32 s{sWO}, s{sWO}, s71
    s_add_u32 s{sWO}, s{sWO}, {64*896}
    s_mul_i32 s63, s{sW}, 7168
    s_add_u32 m0, s63, 65536
    s_waitcnt lgkmcnt(0)
    v_cmp_lt_u32 vcc, s{sFB}, v1
    s_cbranch_vccnz L_fallback
    s_cmp_lt_u32 s{sP}, 14
    s_cbranch_scc1 L_proj
    s_waitcnt vmcnt(0)
    s_mov_b64 exec, 1
    buffer_store_dword v{TAG}, off, {sr(SWS)}, s62 sc1
    s_mov_b64 exec, -1
    """)
    stamp(9)
    dump()
    a("s_endpgm")
    a("L_proj:")
    for i in range(7):
        a(f"buffer_load_dwordx4 v{9 + i % 2}, {sr(SWB)}, s{sWO} offen offset:{1024*(i%2)} lds")
        if i % 2:
            a("s_add_u32 m0, m0, 2048")
            a(f"s_add_u32 s{sWO}, s{sWO}, {2*7168}")
    WFR, OFR, ACC = 16, 144, 208
    a(f"""
    s_cmp_ge_u32 s{sP}, 7
    s_cselect_b32 s63, 2, 0
    s_lshl_b32 s61, s{sTB}, 2
    s_add_u32 s63, s63, s61
    s_add_u32 s61, s63, s{sE}
    s_lshl_b32 s61, s61, 2
    s_add_u32 s61, s61, s{sT}                 ; qtile*4 + t
    s_lshl_b32 s{sFL}, s61, 5
    s_add_u32 s{sFL}, s{sFL}, {FO}
    s_lshl_b32 s61, s61, 14
    s_add_u32 s61, s61, {OF}
    v_and_b32 v8, 7, v2
    v_lshlrev_b32 v8, 2, v8
    s_waitcnt vmcnt(7)
    s_mov_b64 exec, 1
    buffer_store_dword v{TAG}, off, {sr(SWS)}, s62 sc1
    s_mov_b64 exec, -1
    {POLL}
    """)
    stamp(9)
    RS = 272
    a(f"""
    v_lshrrev_b32 v12, 5, v2                  ; hf
    v_bfe_u32 v13, v2, 2, 2                   ; r
    v_lshl_add_u32 v13, v12, 2, v13
    v_lshlrev_b32 v13, 7, v13
    v_and_b32 v14, 3, v2
    v_lshl_add_u32 v13, v14, 3, v13
    v_bfe_u32 v14, v2, 4, 1
    v_lshl_add_u32 v13, v14, 5, v13
    v_bfe_u32 v14, v2, 3, 1
    v_lshl_add_u32 v13, v14, 6, v13
    s_mul_i32 s62, s{sT}, {224*128}
    v_add_u32 v10, s62, v13
    v_xor_b32 v11, 64, v10
    s_mov_b32 s{SO}, s18
    s_mov_b32 s{SO+1}, s19
    s_mov_b32 s{SO+2}, {2048*896}
    s_mov_b32 s{SO+3}, 0x00020000
    v_and_b32 v13, 31, v2
    s_lshl_b32 s62, s{sT}, 6
    s_lshl_b32 s22, s{sE}, 5
    s_add_u32 s62, s62, s22
    v_add_u32 v13, s62, v13
    v_mul_u32_u24 v13, {RS}, v13
    v_lshl_add_u32 v12, v12, 4, v13
    v_lshrrev_b32 v14, 3, v0
    v_and_b32 v15, 7, v0
    v_mul_u32_u24 v13, {RS}, v14
    v_lshl_add_u32 v13, v15, 5, v13
    s_lshl_b32 s63, s63, 5
    v_add_u32 v14, s63, v14
    v_mul_u32_u24 v14, 896, v14
    v_lshl_add_u32 v14, v15, 4, v14
    s_waitcnt vmcnt(2)
    s_barrier
    """)
    for i in range(16):
        off = (28 * (i // 2) + 16 * (i % 2)) * 128
        b = WFR + i * 8
        if i >= 3 and i % 2:
            a("s_waitcnt lgkmcnt(4)")
        for ct in range(2):
            a(f"ds_read_b64_tr_b16 {vr(b+4*ct,2)}, v{10+ct} offset:{off}")
            a(f"ds_read_b64_tr_b16 {vr(b+4*ct+2,2)}, v{10+ct} offset:{off+1024}")
    a(f"""
    s_mov_b32 s{sSPIN}, {SPIN}
    L_spin3:
    s_waitcnt vmcnt(0)
    v_cmp_ne_u32 vcc, v{TAG}, v{PD}
    s_cbranch_vccz L_go3
    {POLL}
    s_sub_u32 s{sSPIN}, s{sSPIN}, 1
    s_cbranch_scc0 L_spin3
    L_go3:
    """)
    stamp(10)
    for i in range(16):
        if i % 4 == 0 and i:
            a("s_add_u32 s61, s61, 4096")
        a(f"buffer_load_dwordx4 {vr(OFR+4*i,4)}, v{VL}, {sr(SWS)}, s61 offen offset:{(i%4)*1024} sc1")
    a("s_waitcnt lgkmcnt(0)")
    a("s_barrier")
    for i in range(16):
        a(f"s_waitcnt vmcnt({15-i})")
        b = WFR + i * 8
        for ct in range(2):
            a(mfma(ACC + 16 * ct, b + 4 * ct, OFR + 4 * i, None if i == 0 else ACC + 16 * ct))
    a("s_nop 10")
    for ct in range(2):
        for q in range(4):
            a(f"ds_write_b128 v12, {vr(ACC+16*ct+4*q,4)} offset:{ct*128+q*32}")
    a("s_waitcnt lgkmcnt(0)")
    a("s_barrier")
    for q in range(4):
        for h in range(2):
            a(f"ds_read_b128 {vr(16+8*q+4*h,4)}, v13 offset:{q*64*RS+16*h}")
    a(f"""
    s_or_b32 s61, s2, s{sW}
    s_cbranch_scc1 L_noepoch
    s_mov_b32 s61, {GW}
    s_mov_b64 exec, 1
    buffer_store_dword v{TAG}, off, {sr(SWS)}, s61 sc1
    s_mov_b64 exec, -1
    L_noepoch:
    """)
    for q in range(1, 4):
        a(f"s_waitcnt lgkmcnt({6-2*q})")
        for r in range(0, 8, 2):
            a(f"v_pk_add_f32 {vr(16+r,2)}, {vr(16+r,2)}, {vr(16+8*q+r,2)}")
    for r in range(4):
        a(f"v_cvt_pk_bf16_f32 v{16+r}, v{16+2*r}, v{16+2*r+1}")
    a(f"buffer_store_dwordx4 v[16:19], v14, {sr(SO)}, s71 offen")
    dump()
    a("L_end:")
    a("s_endpgm")

    M = 240
    a("L_fallback:")
    a("s_waitcnt vmcnt(0)")
    a(f"s_mov_b32 s{sFB}, 1")
    for j in range(4):
        a(f"v_mov_b32 v{M+j}, 0xff800000")
    a(f"s_mov_b32 s{sPASS}, 16")
    a("L_f1:")
    a(ldK(0))
    a("s_waitcnt vmcnt(0)")
    for j in range(4):
        a(mfma(S + 16 * j, K, Q + 8 * j))
        a(mfma(S + 16 * j, K + 4, Q + 8 * j + 4, S + 16 * j))
    a("s_nop 15")
    for j in range(4):
        for r in range(0, 16, 2):
            a(f"v_max3_f32 v{M+j}, v{M+j}, v{S+16*j+r}, v{S+16*j+r+1}")
    a(f"""
    s_sub_u32 s{sPASS}, s{sPASS}, 1
    s_cmp_lg_u32 s{sPASS}, 0
    s_cbranch_scc1 L_f1
    v_lshlrev_b32 v1, 2, v2
    s_lshl_b32 s63, s{sE}, 2
    """)
    for j in range(4):
        a(f"""
        s_add_u32 s61, s{sT}, {j+1}
        s_and_b32 s61, s61, 3
        s_add_u32 s61, s61, s63
        s_lshl_b32 s61, s61, 10
        s_add_u32 s61, s61, 65536
        v_add_u32 v{244+j}, s61, v1
        """)
    a(f"s_lshl_b32 s61, s{sT}, 8")
    for j in range(4):
        a(f"v_add_u32 v1, s61, v{244+j}")
        a(f"ds_write_b32 v1, v{M+j}")
    a("s_waitcnt lgkmcnt(0)")
    a("s_barrier")
    for j in range(4):
        for q in range(4):
            a(f"ds_read_b32 v{S+4*j+q}, v{244+j} offset:{256*q}")
        a("s_waitcnt lgkmcnt(0)")
    for j in range(4):
        a(f"""
        v_max3_f32 v{M+j}, v{S+4*j}, v{S+4*j+1}, v{S+4*j+2}
        v_max_f32 v{M+j}, v{M+j}, v{S+4*j+3}
        v_mov_b32 v1, v{M+j}
        s_nop 1
        v_permlane32_swap_b32 v1, v{M+j}
        s_nop 1
        v_max_f32 v{M+j}, v{M+j}, v1
        """)
    for i in range(64):
        a(f"v_mov_b32 v{O+i}, 0")
    a(f"s_mov_b32 s{sPASS}, 16")
    a("s_barrier")
    a("L_f2:")
    a(ldK(0))
    a(ldV(0))
    a("s_waitcnt vmcnt(0)")
    for j in range(4):
        a(mfma(S + 16 * j, K, Q + 8 * j))
        a(mfma(S + 16 * j, K + 4, Q + 8 * j + 4, S + 16 * j))
    a("s_nop 15")
    for j in range(4):
        for r in range(16):
            a(f"v_sub_f32 v{S+16*j+r}, v{S+16*j+r}, v{M+j}")
        for r in range(16):
            a(f"v_exp_f32 v{S+16*j+r}, v{S+16*j+r}")
    a("s_nop 3")
    for j in range(4):
        a(smf(O + 16 * j, V, S + 16 * j))
        a(smf(O + 16 * j, V + 4, S + 16 * j + 8))
    a(f"""
    s_nop 15
    s_sub_u32 s{sPASS}, s{sPASS}, 1
    s_cmp_lg_u32 s{sPASS}, 0
    s_cbranch_scc1 L_f2
    """)
    for j in range(3):
        a(wr(j))
    a("s_branch L_red")

    head = "; generated by gen2.py (hand-written generator)\n; @launch grid=(256,1,1) block=(512,1,1) lds=163840\n"
    return head + a.text() + f""".section .rodata,"a"
.p2align 6
.amdhsa_kernel {k}
  .amdhsa_next_free_vgpr 256
  .amdhsa_next_free_sgpr 102
  .amdhsa_accum_offset 256
  .amdhsa_group_segment_fixed_size 0
  .amdhsa_kernarg_size 80
  .amdhsa_user_sgpr_count 2
  .amdhsa_user_sgpr_kernarg_segment_ptr 1
  .amdhsa_system_sgpr_workgroup_id_x 1
.end_amdhsa_kernel
"""


if __name__ == "__main__":
    opt = dict(x.split("=", 1) for x in sys.argv[2:])
    path = sys.argv[1] if len(sys.argv) > 1 else f"cdna_kernels/{NAME}.s"
    open(path, "w").write(gen(opt))
```

```python
import sys, math
from gen import A, vr, f32, mfma, NAME

KVF = 0
OF = 8 << 20
FK = 12 << 20
FO = FK + 65536
GW = FK + 131072
WS_BYTES = 13 << 20
STAMP = 20 << 20
TAGC = 0x9E3779B9
SPIN = 1 << 16

SX, SW, SKV, SWS, SG, SWB, SO = 24, 28, 32, 36, 40, 44, 48
sW, sT, sE, sP, sTB, sHB, sKC, sM0, sCOL = 52, 53, 54, 55, 56, 57, 58, 59, 60
sKV, sWO, sPASS, sFB, sSPIN, sFL = 64, 65, 66, 67, 69, 70
O, S, Q, K, V = 16, 80, 144, 176, 208
XF, WF, AK, AV, AQ, Z = 16, 128, 184, 216, 224, 240
VL, IDX, TAG, GS, PD = 3, 4, 5, 6, 7


def sr(a):
    return f"s[{a}:{a+3}]"


def gen(opt):
    a = A()
    ST = opt.get("st", "sc1")
    nst = [0]

    def stamp(i):
        if opt.get("stamp"):
            a(f"s_memrealtime s[{72+2*i}:{73+2*i}]")
        if opt.get("hold"):
            hs, hx = opt["hold"].split(":")
            if i == 0:
                a("s_memrealtime s[72:73]")
            if int(hs) == i:
                nst[0] += 1
                if opt.get("hwg"):
                    a(f"s_cmp_lg_u32 s2, {opt['hwg']}")
                    a(f"s_cbranch_scc1 L_hx{nst[0]}")
                a(f"""
                L_hold{nst[0]}:
                s_memrealtime s[74:75]
                s_waitcnt lgkmcnt(0)
                s_sub_u32 s74, s74, s72
                s_cmp_lt_u32 s74, {int(float(hx)*100)}
                s_cbranch_scc1 L_hold{nst[0]}
                L_hx{nst[0]}:
                """)

    def dump():
        stamp(11)
        if not opt.get("stamp"):
            return
        if opt.get("stamp") == "2":
            nst[0] += 1
            a(f"""
            s_memtime s[98:99]
            s_load_dwordx2 s[96:97], s[0:1], 64
            s_waitcnt lgkmcnt(0)
            s_sub_u32 s100, s98, s100
            s_cmp_lg_u32 s2, {opt.get("wg", "0")}
            s_cbranch_scc1 L_nd{nst[0]}
            s_cmp_lg_u32 s{sW}, 0
            s_cbranch_scc1 L_nd{nst[0]}
            s_mov_b32 s98, 256
            s_mov_b32 s99, 0x00020000
            """)
            for i in range(1, 12):
                a(f"s_sub_u32 s{72+2*i}, s{72+2*i}, s72")
            a("s_mov_b32 s72, s100")
            for q in range(3):
                for i in range(4):
                    a(f"v_mov_b32 v{240+4*q+i}, s{72+2*(4*q+i)}")
                a(f"buffer_store_dwordx4 {vr(240+4*q,4)}, off, s[96:99], 0 offset:{16*q}")
            a(f"L_nd{nst[0]}:")
            return
        a(f"""
        s_mov_b32 s96, s20
        s_mov_b32 s97, s21
        s_mov_b32 s98, {32 << 20}
        s_mov_b32 s99, 0x00020000
        s_lshl_b32 s100, s2, 3
        s_add_u32 s100, s100, s{sW}
        s_lshl_b32 s100, s100, 6
        s_add_u32 s100, s100, {STAMP}
        s_waitcnt lgkmcnt(0)
        """)
        for q in range(3):
            for i in range(4):
                a(f"v_mov_b32 v{240+4*q+i}, s{72+2*(4*q+i)}")
            a(f"buffer_store_dwordx4 {vr(240+4*q,4)}, off, s[96:99], s100 offset:{16*q}")

    def smf(o, v, s):
        return f"v_smfmac_f32_32x32x32_bf16 {vr(o,16)}, {vr(v,4)}, {vr(s,8)}, v{IDX}"

    k = NAME + "_kernel"
    a('.amdgcn_target "amdgcn-amd-amdhsa--gfx950"')
    a(".text")
    a(f".globl {k}")
    a(".p2align 8")
    a(f".type {k},@function")
    a(f"{k}:")
    if opt.get("stamp"):
        for i in range(74, 96):
            a(f"s_mov_b32 s{i}, 0")
    stamp(0)
    if opt.get("stamp") == "2":
        a("s_memtime s[100:101]")
    a(f"""
    s_cmp_ge_u32 s2, 256
    s_cbranch_scc1 L_end
    s_load_dwordx16 s[4:19], s[0:1], 0
    s_load_dwordx2 s[20:21], s[0:1], 72
    v_lshrrev_b32 v1, 6, v0
    v_and_b32 v2, 63, v0                      ; lane
    s_and_b32 s22, s2, 7
    s_lshr_b32 s23, s2, 3
    v_readfirstlane_b32 s{sW}, v1
    s_lshl_b32 s{sP}, s22, 1
    s_and_b32 s22, s23, 1
    s_add_u32 s{sP}, s{sP}, s22
    s_lshr_b32 s{sTB}, s23, 1
    s_and_b32 s22, s{sP}, 7
    s_mul_i32 s{sKC}, s22, 3
    s_add_u32 s{sKC}, s{sKC}, s{sTB}
    s_mul_i32 s23, s{sKC}, 9363
    s_lshr_b32 s23, s23, 16
    s_mul_i32 s23, s23, 7
    s_sub_u32 s{sKC}, s{sKC}, s23
    s_mul_i32 s{sCOL}, s22, 112
    s_add_u32 s{sCOL}, s{sCOL}, 896
    v_lshrrev_b32 v11, 3, v2                  ; l/8
    v_and_b32 v12, 7, v2
    v_lshrrev_b32 v13, 4, v2                  ; l/16
    v_xor_b32 v14, v12, v13
    s_lshl_b32 s22, s{sTB}, 7
    s_lshl_b32 s23, s{sW}, 4
    s_add_u32 s22, s22, s23
    v_add_u32 v1, s22, v11
    v_mul_u32_u24 v1, 896, v1
    v_lshl_add_u32 v8, v14, 4, v1             ; x rows 16w..16w+7
    v_xor_b32 v14, 4, v14
    v_lshl_add_u32 v9, v14, 4, v1
    v_add_u32 v9, {7168-1024}, v9
    v_and_b32 v13, 1, v13
    v_lshlrev_b32 v13, 2, v13
    v_xor_b32 v248, v12, v13
    s_lshl_b32 s23, s{sW}, 3
    v_add_u32 v1, s23, v11
    v_mul_u32_u24 v1, 2688, v1
    v_lshl_add_u32 v10, v248, 4, v1
    v_cmp_eq_u32 vcc, 7, v248
    v_mov_b32 v1, 0x40000000
    s_lshl_b32 s{sM0}, s{sW}, 12
    v_cndmask_b32 v10, v10, v1, vcc
    s_cmp_lt_u32 s{sP}, 8
    s_waitcnt lgkmcnt(0)
    s_mov_b32 s{SX}, s4
    s_mov_b32 s{SX+1}, s5
    s_mov_b32 s{SX+2}, {2048*896}
    s_mov_b32 s{SX+3}, 0x00020000
    s_cselect_b32 s{SW}, s6, s12
    s_cselect_b32 s{SW+1}, s7, s13
    s_mov_b32 s{SW+2}, {448*2688}
    s_mov_b32 s{SW+3}, 0x00020000
    s_add_u32 s3, s{sKC}, s{sW}
    """)

    def nextkc():
        a(f"""
        s_add_u32 s{sKC}, s{sKC}, 1
        s_cmp_eq_u32 s{sKC}, 7
        s_cselect_b32 s{sKC}, 0, s{sKC}
        """)

    def dma(slot):
        a(f"""
        s_add_u32 m0, s{sM0}, {slot*32768}
        s_lshl_b32 s61, s{sKC}, 7
        s_mul_i32 s62, s{sKC}, 172032
        buffer_load_dwordx4 v8, {sr(SX)}, s61 offen lds
        s_add_u32 s62, s62, s{sCOL}
        buffer_load_dwordx4 v9, {sr(SX)}, s61 offen offset:1024 lds
        s_add_u32 m0, m0, 2048
        s_sub_u32 s63, s62, 128
        buffer_load_dwordx4 v10, {sr(SW)}, s62 offen lds
        s_add_u32 s{sKC}, s{sKC}, 1
        s_cmp_eq_u32 s{sKC}, 7
        buffer_load_dwordx4 v10, {sr(SW)}, s63 offen offset:1024 lds
        s_cselect_b32 s{sKC}, 0, s{sKC}
        """)

    def dmaq(c0, c1):
        a(f"""
        s_mov_b32 exec_lo, 0xf7f77f7f
        s_mov_b32 exec_hi, 0xf7f77f7f
        s_lshl_b32 s61, s{sW}, 10
        """)
        for c in range(c0, c1):
            a(f"""
            s_mul_i32 s62, s{sKC}, 172032
            s_add_u32 m0, s61, {65536 + c*8192}
            s_add_u32 s62, s62, s{sCOL}
            s_add_u32 s{sKC}, s{sKC}, 1
            s_cmp_eq_u32 s{sKC}, 7
            buffer_load_dwordx4 v10, {sr(SW)}, s62 offen lds
            s_cselect_b32 s{sKC}, 0, s{sKC}
            """)
        a("s_mov_b64 exec, -1")

    for s in range(5):
        dma(s)
    a(f"""
    s_mov_b32 s{SWS}, s20
    s_mov_b32 s{SWS+1}, s21
    s_mov_b32 s{SWS+2}, {WS_BYTES}
    s_mov_b32 s{SWS+3}, 0x00020000
    s_mov_b32 s{SG}, s16
    s_mov_b32 s{SG+1}, s17
    s_mov_b32 s{SG+2}, 896
    s_mov_b32 s{SG+3}, 0x00020000
    s_mov_b32 s61, {GW}
    s_sub_u32 s62, s3, 7
    s_cselect_b32 s3, s3, s62
    s_lshl_b32 s3, s3, 7
    v_lshlrev_b32 v1, 1, v2
    buffer_load_dword v{TAG}, off, {sr(SWS)}, s61 sc1
    buffer_load_ushort v244, v1, {sr(SG)}, s3 offen
    s_and_b32 s{sT}, s{sW}, 3
    s_lshr_b32 s{sE}, s{sW}, 2
    s_lshl_b32 s{sHB}, s{sP}, 1
    s_add_u32 s{sHB}, s{sHB}, s{sE}
    s_lshl_b32 s61, s{sHB}, 18
    s_add_u32 s{SKV}, s20, s61
    s_addc_u32 s{SKV+1}, s21, 0
    s_mov_b32 s{SKV+2}, 262144
    s_mov_b32 s{SKV+3}, 0x00020000
    s_lshl_b32 s{sKV}, s{sTB}, 2
    s_add_u32 s{sKV}, s{sKV}, s{sT}
    s_lshl_b32 s{sKV}, s{sKV}, 12
    s_lshl_b32 s{sFL}, s{sHB}, 2
    s_add_u32 s{sFL}, s{sFL}, s{sT}
    s_lshl_b32 s{sFL}, s{sFL}, 7
    s_add_u32 s{sFL}, s{sFL}, {FK}
    v_lshlrev_b32 v{VL}, 4, v2
    v_mov_b32 v{IDX}, 0xdddddddd
    v_mul_u32_u24 v249, 896, v11
    v_lshl_add_u32 v249, v248, 4, v249
    v_and_b32 v1, 31, v2                      ; n
    v_lshrrev_b32 v250, 5, v2                 ; hf
    v_bfe_u32 v12, v2, 1, 3
    v_xor_b32 v12, v250, v12
    v_and_b32 v13, 15, v2
    v_lshlrev_b32 v13, 7, v13
    v_lshl_add_u32 v12, v12, 4, v13
    v_bfe_u32 v13, v2, 4, 1
    v_lshl_add_u32 v12, v13, 12, v12
    s_lshl_b32 s61, s{sT}, 13
    v_add_u32 v11, s61, v12
    v_xor_b32 v12, 32, v11
    v_xor_b32 v14, 96, v11
    v_and_b32 v15, 3, v2
    v_lshlrev_b32 v15, 3, v15
    v_lshl_add_u32 v15, v13, 5, v15           ; 32*b4 + 8*c4
    v_xor_b32 v13, 64, v11
    s_mul_i32 s61, s{sE}, 56
    s_lshl_b32 s62, s{sE}, 3
    s_sub_u32 s62, 120, s62
    v_cmp_eq_u32 vcc, 56, v15
    v_add_u32 v15, s61, v15
    v_mov_b32 v247, s62
    v_cndmask_b32 v15, v15, v247, vcc
    v_bfe_u32 v247, v2, 3, 1
    v_lshlrev_b32 v247, 6, v247
    v_xor_b32 v15, v15, v247
    v_bfe_u32 v247, v2, 2, 2
    v_lshl_add_u32 v15, v247, 7, v15
    v_lshl_add_u32 v246, v250, 10, v15
    v_add_u32 v246, 65536, v246               ; Wq
    v_lshl_add_u32 v15, v250, 12, v15
    v_add_u32 v15, 2048, v15
    v_bfe_u32 v247, v2, 1, 1
    v_lshlrev_b32 v247, 6, v247
    v_xor_b32 v247, 112, v247
    v_lshl_add_u32 v247, v0, 7, v247
    v_cmp_eq_u32 vcc, 28, v1
    v_add_u32 v247, 65536, v247
    v_mov_b32 v245, 0
    v_cndmask_b32 v{AV}, 0, 1.0, vcc
    """)
    for i in range(1, 16):
        a(f"v_mov_b32 v{AV+i}, v{AV}")
    for i in range(4):
        a(f"v_mov_b32 v{Z+i}, 0")

    def reads(c, st):
        off = (c % 5 % 2) * 32768
        a(f"ds_read_b128 {vr(XF+16*c+4*st,4)}, v{11+st} offset:{off}")
        for m in range(2):
            b = WF + 8 * st + 4 * m
            a(f"ds_read_b64_tr_b16 {vr(b,2)}, v15 offset:{off+st*8192+m*1024}")
            a(f"ds_read_b64_tr_b16 {vr(b+2,2)}, v15 offset:{off+st*8192+m*1024+512}")

    def mm(c, st):
        x = XF + 16 * c + 4 * st
        a(mfma(AK, WF + 8 * st, x, None if (c == 0 and st == 0) else AK))
        a(mfma(AV, x, WF + 8 * st + 4, AV))

    waits = [18, 14, 14, 14, 14, 11, 7]
    for c in range(7):
        a(f"s_waitcnt vmcnt({waits[c]})")
        a("s_barrier")
        if c == 0:
            stamp(1)
        reads(c, 0)
        reads(c, 1)
        if c in (1, 2):
            dma(c - 1)
        if c == 3:
            a(f"s_sub_u32 s{sCOL}, s{sCOL}, 896")
            dmaq(0, 4)
        if c == 4:
            dmaq(4, 7)
        a("s_waitcnt lgkmcnt(5)")
        mm(c, 0)
        reads(c, 2)
        a("s_waitcnt lgkmcnt(5)")
        mm(c, 1)
        reads(c, 3)
        if c == 5:
            a("ds_write2_b64 v247, v[244:245], v[244:245] offset0:0 offset1:1")
            a(f"v_add_u32 v{TAG}, {TAGC}, v{TAG}")
            a("s_waitcnt lgkmcnt(6)")
        else:
            a("s_waitcnt lgkmcnt(5)")
        mm(c, 2)
        if c in (1, 3, 4):
            d = 65536 if c != 4 else -131072
            for r in range(11, 16):
                a(f"v_add_u32 v{r}, {d & 0xffffffff}, v{r}")
        a("s_waitcnt lgkmcnt(0)")
        mm(c, 3)
    stamp(2)
    a(f"""
    s_add_u32 s61, s{sTB}, s{sTB}
    s_add_u32 s61, s61, s61
    s_add_u32 s61, s61, s{sFL}
    v_add_u32 v8, s{sTB}, v2
    v_and_b32 v8, 15, v8
    v_lshlrev_b32 v8, 2, v8
    s_nop 4
    """)
    for r in range(8):
        a(f"v_cvt_pk_bf16_f32 v{K+r}, v{AK+2*r}, v{AK+2*r+1}")
    a(f"buffer_store_dwordx4 {vr(K,4)}, v{VL}, {sr(SKV)}, s{sKV} offen {ST}")
    a(f"buffer_store_dwordx4 {vr(K+4,4)}, v{VL}, {sr(SKV)}, s{sKV} offen offset:1024 {ST}")
    for r in range(8):
        a(f"v_cvt_pk_bf16_f32 v{V+r}, v{AV+2*r}, v{AV+2*r+1}")
    a("s_nop 0")
    for x in (0, 1, 4, 5):
        a(f"v_permlane32_swap_b32 v{V+x}, v{V+x+2}")
    a(f"buffer_store_dwordx4 {vr(V,4)}, v{VL}, {sr(SKV)}, s{sKV} offen offset:2048 {ST}")
    a(f"buffer_store_dwordx4 {vr(V+4,4)}, v{VL}, {sr(SKV)}, s{sKV} offen offset:3072 {ST}")
    a("s_waitcnt vmcnt(4)")
    a("s_barrier")
    D = 6

    def rq(st):
        b = WF + 4 * (st % 8)
        a(f"ds_read_b64_tr_b16 {vr(b,2)}, v246 offset:{st*2048}")
        a(f"ds_read_b64_tr_b16 {vr(b+2,2)}, v246 offset:{st*2048+512}")
    for st in range(D):
        rq(st)
    for st in range(28):
        if st + D < 28:
            rq(st + D)
        a(f"s_waitcnt lgkmcnt({2*min(D, 27-st)})")
        a(mfma(AQ, WF + 4 * (st % 8), XF + 4 * st, None if st == 0 else AQ))
    for j in range(4):
        a(f"v_mfma_f32_32x32x16_bf16 {vr(O+16*j,16)}, {vr(Z,4)}, {vr(Z,4)}, 0")
    stamp(3)
    a(f"""
    s_waitcnt vmcnt(0)
    s_mov_b64 exec, 1
    buffer_store_dword v{TAG}, off, {sr(SWS)}, s61 sc1
    s_mov_b64 exec, -1
    buffer_load_dword v{PD}, v8, {sr(SWS)}, s{sFL} offen sc1
    s_mov_b32 s62, {f32(math.log2(math.e) / math.sqrt(28.0))}
    s_lshl_b32 s61, s{sW}, 11
    s_add_u32 s61, s61, 131072
    v_add_u32 v11, s61, v{VL}
    v_mov_b32 v1, v{AQ+12}
    v_mov_b32 v{GS}, v{AQ+12}
    v_cmp_gt_u32 vcc, 32, v2
    """)
    stamp(4)
    for r in range(16):
        a(f"v_mul_f32 v{AQ+r}, s62, v{AQ+r}")
    a(f"v_permlane32_swap_b32 v1, v{GS}")
    for r in range(8):
        a(f"v_cvt_pk_bf16_f32 v{Q+24+r}, v{AQ+2*r}, v{AQ+2*r+1}")
    a(f"""
    v_cndmask_b32 v{Q+30}, 0, v{Q+30}, vcc
    ds_write_b128 v11, {vr(Q+24,4)}
    ds_write_b128 v11, {vr(Q+28,4)} offset:1024
    s_cmp_lt_u32 s{sP}, 8
    s_cselect_b32 s62, {f32(-math.log2(math.e))}, s62
    s_cbranch_scc1 L_gs
    s_mov_b32 s62, {f32(math.log2(math.e))}
    L_gs:
    v_mul_f32 v{GS}, s62, v{GS}
    v_exp_f32 v{GS}, v{GS}
    s_lshl_b32 s63, s{sE}, 2
    """)
    for j in range(3):
        a(f"""
        s_add_u32 s61, s{sT}, {j+1}
        s_and_b32 s61, s61, 3
        s_add_u32 s61, s61, s63
        s_lshl_b32 s62, s61, 11
        s_lshl_b32 s61, s61, 12
        s_add_u32 s62, s62, 131072
        s_add_u32 s61, s61, {65536 + j*32768}
        v_add_u32 v{(11, 1, 15)[j]}, s62, v{VL}
        v_add_u32 v{12+j}, s61, v{VL}
        """)
    a(f"""
    v_add_f32 v{GS}, 1.0, v{GS}
    v_rcp_f32 v{GS}, v{GS}
    s_waitcnt lgkmcnt(0)
    s_barrier
    ds_read_b128 {vr(Q,4)}, v11
    ds_read_b128 {vr(Q+4,4)}, v11 offset:1024
    ds_read_b128 {vr(Q+8,4)}, v1
    ds_read_b128 {vr(Q+12,4)}, v1 offset:1024
    ds_read_b128 {vr(Q+16,4)}, v15
    ds_read_b128 {vr(Q+20,4)}, v15 offset:1024
    s_setprio 3
    s_cmp_lt_u32 s{sW}, 7
    s_cselect_b32 s{SG}, s8, s14
    s_cselect_b32 s{SG+1}, s9, s15
    s_mov_b32 s{SG+2}, {448*896}
    s_cselect_b32 s{sWO}, s{sW}, 0
    s_mul_i32 s{sWO}, s{sWO}, {64*896}
    s_cmp_ge_u32 s{sP}, 7
    s_cselect_b32 s61, 7, 0
    s_sub_u32 s71, s{sP}, s61
    s_cmp_ge_u32 s71, 7
    s_cselect_b32 s61, 7, 0
    s_sub_u32 s71, s71, s61
    s_lshl_b32 s71, s71, 7
    s_add_u32 s{sWO}, s{sWO}, s71
    s_lshl_b32 m0, s{sW}, 13
    s_mov_b32 s{sPASS}, 3
    s_mov_b32 s{sFB}, 0
    s_mov_b32 s{sSPIN}, {SPIN}
    v_mov_b32 v9, v249
    v_add_u32 v10, {7168-1024}, v249
    """)
    a("s_waitcnt lgkmcnt(4)")
    a(mfma(S, K, Q))
    a(mfma(S, K + 4, Q + 4, S))
    a("s_waitcnt lgkmcnt(0)")
    a("s_nop 9")

    def ex(j, r0):
        for r in range(r0, r0 + 4):
            a(f"v_exp_f32 v{S+16*j+r}, v{S+16*j+r}")

    def blk(u, j, mf=True, sm=True, ins=None, wait=None):
        ins = ins or {}
        nj = (j + 1) % 4
        ku = u if j < 3 else (u + 1) % 4
        pj = (j - 1) % 4
        vu = u if j > 0 else (u - 1) % 4
        if wait is not None:
            a(f"s_waitcnt vmcnt({wait})")
        if mf:
            a(mfma(S + 16 * nj, K + 8 * ku, Q + 8 * nj))
        a(ins.get(0, ""))
        ex(j, 0)
        if mf:
            a(mfma(S + 16 * nj, K + 8 * ku + 4, Q + 8 * nj + 4, S + 16 * nj))
        a(ins.get(1, ""))
        ex(j, 4)
        if sm:
            a(smf(O + 16 * pj, V + 8 * vu, S + 16 * pj))
        a(ins.get(2, ""))
        ex(j, 8)
        if sm:
            a(smf(O + 16 * pj, V + 8 * vu + 4, S + 16 * pj + 8))
        a(ins.get(3, ""))
        ex(j, 12)

    def ldK(u):
        return f"""
        s_add_u32 s{sKV}, s{sKV}, 16384
        s_and_b32 s{sKV}, s{sKV}, 0x3ffff
        buffer_load_dwordx4 {vr(K+8*u,4)}, v{VL}, {sr(SKV)}, s{sKV} offen sc1
        buffer_load_dwordx4 {vr(K+8*u+4,4)}, v{VL}, {sr(SKV)}, s{sKV} offen offset:1024 sc1
        """

    def ldV(u):
        return f"""
        buffer_load_dwordx4 {vr(V+8*u,4)}, v{VL}, {sr(SKV)}, s{sKV} offen offset:2048 sc1
        buffer_load_dwordx4 {vr(V+8*u+4,4)}, v{VL}, {sr(SKV)}, s{sKV} offen offset:3072 sc1
        """
    POLL = f"buffer_load_dword v{PD}, v8, {sr(SWS)}, s{sFL} offen sc1"

    blk(0, 0, sm=False)
    blk(0, 1)
    blk(0, 2)
    stamp(5)
    a(f"""
    L_spin1:
    s_waitcnt vmcnt(0)
    v_cmp_ne_u32 vcc, v{TAG}, v{PD}
    s_and_b32 s61, vcc_lo, 0xe
    s_cbranch_scc0 L_go1
    {POLL}
    s_sub_u32 s{sSPIN}, s{sSPIN}, 1
    s_cbranch_scc0 L_spin1
    L_go1:
    """)
    stamp(6)
    for u in (1, 2, 3):
        a(ldK(u))
        a(ldV(u))
    a(POLL)
    blk(0, 3, mf=False)
    a(f"""
    s_and_b32 s61, vcc_lo, 0xfffe
    s_cbranch_scc0 L_go2
    s_mov_b32 s{sSPIN}, {SPIN}
    L_spin2:
    s_waitcnt vmcnt(0)
    v_cmp_ne_u32 vcc, v{TAG}, v{PD}
    s_and_b32 s61, vcc_lo, 0xfffe
    s_cbranch_scc0 L_go2
    {POLL}
    s_sub_u32 s{sSPIN}, s{sSPIN}, 1
    s_cbranch_scc0 L_spin2
    L_go2:
    s_waitcnt vmcnt(9)
    """)
    a(mfma(S, K + 8, Q))
    a(mfma(S, K + 12, Q + 4, S))
    a(ldK(0))
    stamp(7)
    a("s_nop 6")
    a(".p2align 6")
    a("L_loop:")
    WAIT = {1: 9, 2: 10, 3: 10, 0: 9}
    for u in (1, 2, 3, 0):
        for j in range(4):
            ins = {}
            if j == 1:
                ins[2] = ldV((u - 1) % 4)
                if u == 1:
                    ins[2] += f"buffer_load_dwordx4 v9, {sr(SG)}, s{sWO} offen lds\n"
                if u == 2:
                    ins[2] += f"""buffer_load_dwordx4 v10, {sr(SG)}, s{sWO} offen offset:1024 lds
                    s_add_u32 m0, m0, 2048
                    s_add_u32 s{sWO}, s{sWO}, {2*7168}
                    """
            if j == 3:
                ins[2] = ldK(u)
            blk(u, j, ins=ins, wait=WAIT[u] if j == 3 else None)
        if u == 2:
            a(f"""
            s_sub_u32 s{sPASS}, s{sPASS}, 1
            s_cbranch_scc1 L_last
            """)
    a(f"""
    s_setprio 2
    s_cmp_eq_u32 s{sPASS}, 2
    s_cbranch_scc1 L_loop
    s_setprio 1
    s_cmp_eq_u32 s{sPASS}, 1
    s_cbranch_scc1 L_loop
    s_setprio 0
    s_branch L_loop
    L_last:
    """)

    def wr(j):
        return "\n".join(f"ds_write_b128 v{12+j}, {vr(O+16*j+4*r,4)} offset:{r*1024}" for r in range(4)) + "\n"
    blk(3, 0)
    blk(3, 1)
    blk(3, 2, ins={2: wr(0)})
    blk(3, 3, mf=False, ins={3: wr(1)})
    a("s_nop 1")
    a(smf(O + 48, V + 24, S + 48))
    a(smf(O + 48, V + 28, S + 56))
    stamp(8)
    a(f"""
    s_lshl_b32 s61, s{sW}, 12
    s_add_u32 s61, s61, 65536
    v_add_u32 v11, s61, v{VL}
    v_add_u32 v15, 65536, v11
    s_nop 0
    """)
    a(wr(2))
    a("L_red:")
    a("s_waitcnt lgkmcnt(0)")
    a("s_barrier")
    OO = O + 48
    for j in range(3):
        for r in range(4):
            a(f"ds_read_b128 {vr(S+16*j+4*r,4)}, v{15 if j == 2 else 11} offset:{(j%2)*32768+r*1024}")
    a(f"""
    s_lshl_b32 s61, s{sTB}, 2
    s_add_u32 s61, s61, s{sT}
    s_lshl_b32 s61, s61, 5
    s_add_u32 s61, s61, s{sHB}
    s_lshl_b32 s62, s61, 2
    s_add_u32 s62, s62, {FO}
    s_lshl_b32 s61, s61, 11
    s_add_u32 s61, s61, {OF}
    """)
    for j in range(3):
        a(f"s_waitcnt lgkmcnt({8-4*j})")
        for r in range(0, 16, 2):
            a(f"v_pk_add_f32 {vr(OO+r,2)}, {vr(OO+r,2)}, {vr(S+16*j+r,2)}")
    a(f"""
    v_mov_b32 v1, v{OO+12}
    v_mov_b32 v248, v{OO+12}
    v_mov_b32 v250, 0
    s_nop 0
    v_permlane32_swap_b32 v1, v248
    """)
    for r in range(16):
        a(f"v_fma_f32 v250, v{OO+r}, 0, v250")
    a(f"""
    v_cmp_gt_u32 vcc, 32, v2
    v_rcp_f32 v1, v248
    v_add_f32 v250, v250, v248
    v_mul_f32 v1, v1, v{GS}
    v_cndmask_b32 v248, 0, v1, vcc
    """)
    for r in range(12):
        a(f"v_mul_f32 v{OO+r}, v{OO+r}, v1")
    for r in range(12, 16):
        a(f"v_mul_f32 v{OO+r}, v{OO+r}, v248")
    for r in range(8):
        a(f"v_cvt_pk_bf16_f32 v{OO+r}, v{OO+2*r}, v{OO+2*r+1}")
    a(f"""
    buffer_store_dwordx4 {vr(OO,4)}, v{VL}, {sr(SWS)}, s61 offen sc1
    buffer_store_dwordx4 {vr(OO+4,4)}, v{VL}, {sr(SWS)}, s61 offen offset:1024 sc1
    v_mov_b32 v1, {f32(2.0**60)}
    v_cmp_nle_f32 vcc, {f32(2.0**-60)}, v250
    v_cmp_nge_f32 s[22:23], v1, v250
    s_or_b64 vcc, vcc, s[22:23]
    s_cselect_b32 s63, 1, 0
    v_mov_b32 v1, s63
    v_and_b32 v248, 7, v2
    v_lshlrev_b32 v248, 12, v248
    ds_write_b32 v15, v1
    v_add_u32 v248, 131072, v248
    s_waitcnt lgkmcnt(0)
    s_barrier
    ds_read_b32 v1, v248
    s_mov_b32 s{SWB}, s14
    s_mov_b32 s{SWB+1}, s15
    s_mov_b32 s{SWB+2}, {448*896}
    s_mov_b32 s{SWB+3}, 0x00020000
    s_mul_i32 s{sWO}, s{sW}, {56*896}
    s_add_u32 s{sWO}, s{sWO}, s71
    s_add_u32 s{sWO}, s{sWO}, {64*896}
    s_mul_i32 s63, s{sW}, 7168
    s_add_u32 m0, s63, 65536
    s_waitcnt lgkmcnt(0)
    v_cmp_lt_u32 vcc, s{sFB}, v1
    s_cbranch_vccnz L_fallback
    s_cmp_lt_u32 s{sP}, 14
    s_cbranch_scc1 L_proj
    s_waitcnt vmcnt(0)
    s_mov_b64 exec, 1
    buffer_store_dword v{TAG}, off, {sr(SWS)}, s62 sc1
    s_mov_b64 exec, -1
    """)
    stamp(9)
    dump()
    a("s_endpgm")
    a("L_proj:")
    for i in range(7):
        a(f"buffer_load_dwordx4 v{9 + i % 2}, {sr(SWB)}, s{sWO} offen offset:{1024*(i%2)} lds")
        if i % 2:
            a("s_add_u32 m0, m0, 2048")
            a(f"s_add_u32 s{sWO}, s{sWO}, {2*7168}")
    WFR, OFR, ACC = 16, 144, 208
    a(f"""
    s_cmp_ge_u32 s{sP}, 7
    s_cselect_b32 s63, 2, 0
    s_lshl_b32 s61, s{sTB}, 2
    s_add_u32 s63, s63, s61
    s_add_u32 s61, s63, s{sE}
    s_lshl_b32 s61, s61, 2
    s_add_u32 s61, s61, s{sT}                 ; qtile*4 + t
    s_lshl_b32 s{sFL}, s61, 5
    s_add_u32 s{sFL}, s{sFL}, {FO}
    s_lshl_b32 s61, s61, 14
    s_add_u32 s61, s61, {OF}
    v_and_b32 v8, 7, v2
    v_lshlrev_b32 v8, 2, v8
    s_waitcnt vmcnt(7)
    s_mov_b64 exec, 1
    buffer_store_dword v{TAG}, off, {sr(SWS)}, s62 sc1
    s_mov_b64 exec, -1
    {POLL}
    """)
    stamp(9)
    RS = 272
    a(f"""
    v_lshrrev_b32 v12, 5, v2                  ; hf
    v_bfe_u32 v13, v2, 2, 2                   ; r
    v_lshl_add_u32 v13, v12, 2, v13
    v_lshlrev_b32 v13, 7, v13
    v_and_b32 v14, 3, v2
    v_lshl_add_u32 v13, v14, 3, v13
    v_bfe_u32 v14, v2, 4, 1
    v_lshl_add_u32 v13, v14, 5, v13
    v_bfe_u32 v14, v2, 3, 1
    v_lshl_add_u32 v13, v14, 6, v13
    s_mul_i32 s62, s{sT}, {224*128}
    v_add_u32 v10, s62, v13
    v_xor_b32 v11, 64, v10
    s_mov_b32 s{SO}, s18
    s_mov_b32 s{SO+1}, s19
    s_mov_b32 s{SO+2}, {2048*896}
    s_mov_b32 s{SO+3}, 0x00020000
    v_and_b32 v13, 31, v2
    s_lshl_b32 s62, s{sT}, 6
    s_lshl_b32 s22, s{sE}, 5
    s_add_u32 s62, s62, s22
    v_add_u32 v13, s62, v13
    v_mul_u32_u24 v13, {RS}, v13
    v_lshl_add_u32 v12, v12, 4, v13
    v_lshrrev_b32 v14, 3, v0
    v_and_b32 v15, 7, v0
    v_mul_u32_u24 v13, {RS}, v14
    v_lshl_add_u32 v13, v15, 5, v13
    s_lshl_b32 s63, s63, 5
    v_add_u32 v14, s63, v14
    v_mul_u32_u24 v14, 896, v14
    v_lshl_add_u32 v14, v15, 4, v14
    s_waitcnt vmcnt(2)
    s_barrier
    """)
    for i in range(16):
        off = (28 * (i // 2) + 16 * (i % 2)) * 128
        b = WFR + i * 8
        if i >= 3 and i % 2:
            a("s_waitcnt lgkmcnt(4)")
        for ct in range(2):
            a(f"ds_read_b64_tr_b16 {vr(b+4*ct,2)}, v{10+ct} offset:{off}")
            a(f"ds_read_b64_tr_b16 {vr(b+4*ct+2,2)}, v{10+ct} offset:{off+1024}")
    a(f"""
    s_mov_b32 s{sSPIN}, {SPIN}
    L_spin3:
    s_waitcnt vmcnt(0)
    v_cmp_ne_u32 vcc, v{TAG}, v{PD}
    s_cbranch_vccz L_go3
    {POLL}
    s_sub_u32 s{sSPIN}, s{sSPIN}, 1
    s_cbranch_scc0 L_spin3
    L_go3:
    """)
    stamp(10)
    for i in range(16):
        if i % 4 == 0 and i:
            a("s_add_u32 s61, s61, 4096")
        a(f"buffer_load_dwordx4 {vr(OFR+4*i,4)}, v{VL}, {sr(SWS)}, s61 offen offset:{(i%4)*1024} sc1")
    a("s_waitcnt lgkmcnt(0)")
    a("s_barrier")
    for i in range(16):
        a(f"s_waitcnt vmcnt({15-i})")
        b = WFR + i * 8
        for ct in range(2):
            a(mfma(ACC + 16 * ct, b + 4 * ct, OFR + 4 * i, None if i == 0 else ACC + 16 * ct))
    a("s_nop 10")
    for ct in range(2):
        for q in range(4):
            a(f"ds_write_b128 v12, {vr(ACC+16*ct+4*q,4)} offset:{ct*128+q*32}")
    a("s_waitcnt lgkmcnt(0)")
    a("s_barrier")
    for q in range(4):
        for h in range(2):
            a(f"ds_read_b128 {vr(16+8*q+4*h,4)}, v13 offset:{q*64*RS+16*h}")
    a(f"""
    s_or_b32 s61, s2, s{sW}
    s_cbranch_scc1 L_noepoch
    s_mov_b32 s61, {GW}
    s_mov_b64 exec, 1
    buffer_store_dword v{TAG}, off, {sr(SWS)}, s61 sc1
    s_mov_b64 exec, -1
    L_noepoch:
    """)
    for q in range(1, 4):
        a(f"s_waitcnt lgkmcnt({6-2*q})")
        for r in range(0, 8, 2):
            a(f"v_pk_add_f32 {vr(16+r,2)}, {vr(16+r,2)}, {vr(16+8*q+r,2)}")
    for r in range(4):
        a(f"v_cvt_pk_bf16_f32 v{16+r}, v{16+2*r}, v{16+2*r+1}")
    a(f"buffer_store_dwordx4 v[16:19], v14, {sr(SO)}, s71 offen {opt.get('ost', '').replace('_', ' ')}")
    dump()
    a("L_end:")
    a("s_endpgm")

    M = 240
    a("L_fallback:")
    a("s_waitcnt vmcnt(0)")
    a(f"s_mov_b32 s{sFB}, 1")
    for j in range(4):
        a(f"v_mov_b32 v{M+j}, 0xff800000")
    a(f"s_mov_b32 s{sPASS}, 16")
    a("L_f1:")
    a(ldK(0))
    a("s_waitcnt vmcnt(0)")
    for j in range(4):
        a(mfma(S + 16 * j, K, Q + 8 * j))
        a(mfma(S + 16 * j, K + 4, Q + 8 * j + 4, S + 16 * j))
    a("s_nop 15")
    for j in range(4):
        for r in range(0, 16, 2):
            a(f"v_max3_f32 v{M+j}, v{M+j}, v{S+16*j+r}, v{S+16*j+r+1}")
    a(f"""
    s_sub_u32 s{sPASS}, s{sPASS}, 1
    s_cmp_lg_u32 s{sPASS}, 0
    s_cbranch_scc1 L_f1
    v_lshlrev_b32 v1, 2, v2
    s_lshl_b32 s63, s{sE}, 2
    """)
    for j in range(4):
        a(f"""
        s_add_u32 s61, s{sT}, {j+1}
        s_and_b32 s61, s61, 3
        s_add_u32 s61, s61, s63
        s_lshl_b32 s61, s61, 10
        s_add_u32 s61, s61, 65536
        v_add_u32 v{244+j}, s61, v1
        """)
    a(f"s_lshl_b32 s61, s{sT}, 8")
    for j in range(4):
        a(f"v_add_u32 v1, s61, v{244+j}")
        a(f"ds_write_b32 v1, v{M+j}")
    a("s_waitcnt lgkmcnt(0)")
    a("s_barrier")
    for j in range(4):
        for q in range(4):
            a(f"ds_read_b32 v{S+4*j+q}, v{244+j} offset:{256*q}")
        a("s_waitcnt lgkmcnt(0)")
    for j in range(4):
        a(f"""
        v_max3_f32 v{M+j}, v{S+4*j}, v{S+4*j+1}, v{S+4*j+2}
        v_max_f32 v{M+j}, v{M+j}, v{S+4*j+3}
        v_mov_b32 v1, v{M+j}
        s_nop 1
        v_permlane32_swap_b32 v1, v{M+j}
        s_nop 1
        v_max_f32 v{M+j}, v{M+j}, v1
        """)
    for i in range(64):
        a(f"v_mov_b32 v{O+i}, 0")
    a(f"s_mov_b32 s{sPASS}, 16")
    a("s_barrier")
    a("L_f2:")
    a(ldK(0))
    a(ldV(0))
    a("s_waitcnt vmcnt(0)")
    for j in range(4):
        a(mfma(S + 16 * j, K, Q + 8 * j))
        a(mfma(S + 16 * j, K + 4, Q + 8 * j + 4, S + 16 * j))
    a("s_nop 15")
    for j in range(4):
        for r in range(16):
            a(f"v_sub_f32 v{S+16*j+r}, v{S+16*j+r}, v{M+j}")
        for r in range(16):
            a(f"v_exp_f32 v{S+16*j+r}, v{S+16*j+r}")
    a("s_nop 3")
    for j in range(4):
        a(smf(O + 16 * j, V, S + 16 * j))
        a(smf(O + 16 * j, V + 4, S + 16 * j + 8))
    a(f"""
    s_nop 15
    s_sub_u32 s{sPASS}, s{sPASS}, 1
    s_cmp_lg_u32 s{sPASS}, 0
    s_cbranch_scc1 L_f2
    """)
    for j in range(3):
        a(wr(j))
    a("s_branch L_red")

    head = "; generated by gen2.py (hand-written generator)\n; @launch grid=(256,1,1) block=(512,1,1) lds=163840\n"
    extra = ""
    if opt.get("tiny"):
        pos, us = opt["tiny"].split(":")
        l1 = f"; @launch kernel={k} grid=(256,1,1) block=(512,1,1) lds=163840\n"
        l2 = "; @launch kernel=tiny_kernel grid=(1,1,1) block=(64,1,1) lds=0\n"
        head = "; diag\n" + (l2 + l1 if pos == "pre" else l1 + l2)
        a(f"""
        .globl tiny_kernel
        .p2align 8
        .type tiny_kernel,@function
        tiny_kernel:
        s_memrealtime s[4:5]
        L_tiny:
        s_memrealtime s[6:7]
        s_waitcnt lgkmcnt(0)
        s_sub_u32 s6, s6, s4
        s_cmp_lt_u32 s6, {int(float(us)*100)}
        s_cbranch_scc1 L_tiny
        s_endpgm
        """)
        extra = """.p2align 6
.amdhsa_kernel tiny_kernel
  .amdhsa_next_free_vgpr 8
  .amdhsa_next_free_sgpr 16
  .amdhsa_accum_offset 8
  .amdhsa_group_segment_fixed_size 0
  .amdhsa_kernarg_size 80
  .amdhsa_user_sgpr_count 2
  .amdhsa_user_sgpr_kernarg_segment_ptr 1
  .amdhsa_system_sgpr_workgroup_id_x 1
.end_amdhsa_kernel
"""
    return head + a.text() + f""".section .rodata,"a"
.p2align 6
.amdhsa_kernel {k}
  .amdhsa_next_free_vgpr 256
  .amdhsa_next_free_sgpr 102
  .amdhsa_accum_offset 256
  .amdhsa_group_segment_fixed_size 0
  .amdhsa_kernarg_size 80
  .amdhsa_user_sgpr_count 2
  .amdhsa_user_sgpr_kernarg_segment_ptr 1
  .amdhsa_system_sgpr_workgroup_id_x 1
.end_amdhsa_kernel
""" + extra


if __name__ == "__main__":
    opt = dict(x.split("=", 1) for x in sys.argv[2:])
    path = sys.argv[1] if len(sys.argv) > 1 else f"cdna_kernels/{NAME}.s"
    open(path, "w").write(gen(opt))
```

```python
import sys, math
from gen import A, vr, f32, mfma, NAME

KVF = 0
OF = 8 << 20
FK = 12 << 20
FO = FK + (256 << 10)
GW = FK + (512 << 10)
WS_BYTES = 13 << 20
STAMP = 20 << 20
TAGC = 0x9E3779B9
SPIN = 1 << 16

SX, SW, SKV, SWS, SG, SWB, SO = 24, 28, 32, 36, 40, 44, 48
sW, sT, sE, sP, sTB, sHB, sKC, sM0, sCOL = 52, 53, 54, 55, 56, 57, 58, 59, 60
sKV, sWO, sPASS, sFB, sLD, sSPIN, sFL = 64, 65, 66, 67, 68, 69, 70
O, S, Q, K, V = 16, 80, 144, 176, 208
XF, WF, AK, AV, AQ, Z = 16, 128, 184, 216, 224, 240
VL, IDX, TAG, GS, PD = 3, 4, 5, 6, 7


def sr(a):
    return f"s[{a}:{a+3}]"


def gen(opt):
    a = A()
    ST = opt.get("st", "sc1")
    nst = [0]
    FS = int(opt.get("fs", 2))
    FS2 = int(opt.get("fs2", 6))
    WFL = opt.get("wf", "").replace("_", " ")
    XFL = opt.get("xf", "").replace("_", " ")

    def stamp(i, grp="0"):
        if opt.get("sg", "0") != grp and i not in (0, 11):
            return
        if opt.get("stamp"):
            a(f"{'s_memtime' if opt.get('cyc') else 's_memrealtime'} s[{72+2*i}:{73+2*i}]")
        if opt.get("hold"):
            hs, hx = opt["hold"].split(":")
            if i == 0:
                a("s_memrealtime s[72:73]")
            if int(hs) == i:
                nst[0] += 1
                if opt.get("hwg"):
                    a(f"s_cmp_lg_u32 s2, {opt['hwg']}")
                    a(f"s_cbranch_scc1 L_hx{nst[0]}")
                a(f"""
                L_hold{nst[0]}:
                s_memrealtime s[74:75]
                s_waitcnt lgkmcnt(0)
                s_sub_u32 s74, s74, s72
                s_cmp_lt_u32 s74, {int(float(hx)*100)}
                s_cbranch_scc1 L_hold{nst[0]}
                L_hx{nst[0]}:
                """)

    def dump():
        stamp(11)
        if not opt.get("stamp"):
            return
        if opt.get("stamp") == "2":
            nst[0] += 1
            a(f"""
            s_memtime s[98:99]
            s_load_dwordx2 s[96:97], s[0:1], 64
            s_waitcnt lgkmcnt(0)
            s_sub_u32 s100, s98, s100
            s_cmp_lg_u32 s2, {opt.get("wg", "0")}
            s_cbranch_scc1 L_nd{nst[0]}
            s_cmp_lg_u32 s{sW}, 0
            s_cbranch_scc1 L_nd{nst[0]}
            s_mov_b32 s98, 256
            s_mov_b32 s99, 0x00020000
            """)
            for i in range(1, 12):
                a(f"s_sub_u32 s{72+2*i}, s{72+2*i}, s72")
            a("s_mov_b32 s72, s100")
            for q in range(3):
                for i in range(4):
                    a(f"v_mov_b32 v{240+4*q+i}, s{72+2*(4*q+i)}")
                a(f"buffer_store_dwordx4 {vr(240+4*q,4)}, off, s[96:99], 0 offset:{16*q}")
            a(f"L_nd{nst[0]}:")
            return
        a(f"""
        s_mov_b32 s96, s20
        s_mov_b32 s97, s21
        s_mov_b32 s98, {32 << 20}
        s_mov_b32 s99, 0x00020000
        s_lshl_b32 s100, s2, 3
        s_add_u32 s100, s100, s{sW}
        s_lshl_b32 s100, s100, 6
        s_add_u32 s100, s100, {STAMP}
        s_waitcnt lgkmcnt(0)
        """)
        for q in range(3):
            for i in range(4):
                a(f"v_mov_b32 v{240+4*q+i}, s{72+2*(4*q+i)}")
            a(f"buffer_store_dwordx4 {vr(240+4*q,4)}, off, s[96:99], s100 offset:{16*q}")

    def smf(o, v, s):
        return f"v_smfmac_f32_32x32x32_bf16 {vr(o,16)}, {vr(v,4)}, {vr(s,8)}, v{IDX}"

    k = NAME + "_kernel"
    a('.amdgcn_target "amdgcn-amd-amdhsa--gfx950"')
    a(".text")
    a(f".globl {k}")
    a(".p2align 8")
    a(f".type {k},@function")
    a(f"{k}:")
    if opt.get("stamp"):
        for i in range(74, 96):
            a(f"s_mov_b32 s{i}, 0")
    stamp(0)
    if opt.get("stamp") == "2":
        a("s_memtime s[100:101]")
    a(f"""
    s_cmp_ge_u32 s2, 256
    s_cbranch_scc1 L_end
    s_load_dwordx16 s[4:19], s[0:1], 0
    s_load_dwordx2 s[20:21], s[0:1], 72
    v_lshrrev_b32 v1, 6, v0
    v_and_b32 v2, 63, v0                      ; lane
    s_and_b32 s22, s2, 7
    s_lshr_b32 s23, s2, 3
    v_readfirstlane_b32 s{sW}, v1
    s_lshl_b32 s{sP}, s22, 1
    s_and_b32 s22, s23, 1
    s_add_u32 s{sP}, s{sP}, s22
    s_lshr_b32 s{sTB}, s23, 1
    s_and_b32 s22, s{sP}, 7
    s_mul_i32 s{sKC}, s22, {opt.get("rp", 3)}
    s_mul_i32 s23, s{sTB}, {opt.get("rt", 1)}
    s_add_u32 s{sKC}, s{sKC}, s23
    s_mul_i32 s23, s{sKC}, 9363
    s_lshr_b32 s23, s23, 16
    s_mul_i32 s23, s23, 7
    s_sub_u32 s{sKC}, s{sKC}, s23
    s_mul_i32 s{sCOL}, s22, 112
    s_add_u32 s{sCOL}, s{sCOL}, 896
    v_lshrrev_b32 v11, 3, v2                  ; l/8
    v_and_b32 v12, 7, v2
    v_lshrrev_b32 v13, 4, v2                  ; l/16
    v_xor_b32 v14, v12, v13
    s_lshl_b32 s22, s{sTB}, 7
    s_lshl_b32 s23, s{sW}, 4
    s_add_u32 s22, s22, s23
    v_add_u32 v1, s22, v11
    v_mul_u32_u24 v1, 896, v1
    v_lshl_add_u32 v8, v14, 4, v1             ; x rows 16w..16w+7
    v_xor_b32 v14, 4, v14
    v_lshl_add_u32 v9, v14, 4, v1
    v_add_u32 v9, {7168-1024}, v9
    v_and_b32 v13, 1, v13
    v_lshlrev_b32 v13, 2, v13
    v_xor_b32 v248, v12, v13
    s_lshl_b32 s23, s{sW}, 3
    v_add_u32 v1, s23, v11
    v_mul_u32_u24 v1, 2688, v1
    v_lshl_add_u32 v10, v248, 4, v1
    v_cmp_eq_u32 vcc, 7, v248
    v_mov_b32 v1, 0x40000000
    s_lshl_b32 s{sM0}, s{sW}, 12
    v_cndmask_b32 v10, v10, v1, vcc
    s_cmp_lt_u32 s{sP}, 8
    s_waitcnt lgkmcnt(0)
    s_mov_b32 s{SX}, s4
    s_mov_b32 s{SX+1}, s5
    s_mov_b32 s{SX+2}, {2048*896}
    s_mov_b32 s{SX+3}, 0x00020000
    s_cselect_b32 s{SW}, s6, s12
    s_cselect_b32 s{SW+1}, s7, s13
    s_mov_b32 s{SW+2}, {448*2688}
    s_mov_b32 s{SW+3}, 0x00020000
    s_add_u32 s3, s{sKC}, s{sW}
    """)

    def nextkc():
        a(f"""
        s_add_u32 s{sKC}, s{sKC}, 1
        s_cmp_eq_u32 s{sKC}, 7
        s_cselect_b32 s{sKC}, 0, s{sKC}
        """)

    def dma(slot):
        a(f"""
        s_add_u32 m0, s{sM0}, {slot*32768}
        s_lshl_b32 s61, s{sKC}, 7
        s_mul_i32 s62, s{sKC}, 172032
        buffer_load_dwordx4 v8, {sr(SX)}, s61 offen {XFL} lds
        s_add_u32 s62, s62, s{sCOL}
        buffer_load_dwordx4 v9, {sr(SX)}, s61 offen offset:1024 {XFL} lds
        s_add_u32 m0, m0, 2048
        s_sub_u32 s63, s62, 128
        buffer_load_dwordx4 v10, {sr(SW)}, s62 offen {WFL} lds
        s_add_u32 s{sKC}, s{sKC}, 1
        s_cmp_eq_u32 s{sKC}, 7
        buffer_load_dwordx4 v10, {sr(SW)}, s63 offen offset:1024 {WFL} lds
        s_cselect_b32 s{sKC}, 0, s{sKC}
        """)

    def dmaq(c0, c1):
        a(f"""
        s_mov_b32 exec_lo, 0xf7f77f7f
        s_mov_b32 exec_hi, 0xf7f77f7f
        s_lshl_b32 s61, s{sW}, 10
        """)
        for c in range(c0, c1):
            a(f"""
            s_mul_i32 s62, s{sKC}, 172032
            s_add_u32 m0, s61, {65536 + c*8192}
            s_add_u32 s62, s62, s{sCOL}
            s_add_u32 s{sKC}, s{sKC}, 1
            s_cmp_eq_u32 s{sKC}, 7
            buffer_load_dwordx4 v10, {sr(SW)}, s62 offen {WFL} lds
            s_cselect_b32 s{sKC}, 0, s{sKC}
            """)
        a("s_mov_b64 exec, -1")

    DIST = int(opt.get("dist", 2))
    QS = [int(x) for x in opt.get("qs", "3,4").split(",")]
    STAG = opt.get("stag", "0") == "1"
    vm = []

    def after(name):
        return sum(n for _, n in vm[[x for x, _ in vm].index(name) + 1:])
    for s in range(DIST):
        if s == 0:
            stamp(1, "1")
        dma(s)
        vm.append((f"d{s}", 4))
        if s in (0, 1):
            stamp(2 + s, "1")
        if opt.get("ord", "bar") == "bar" and s < DIST - 1:
            a("s_barrier")
    vm.append(("misc", 2))
    a(f"""
    s_mov_b32 s{SWS}, s20
    s_mov_b32 s{SWS+1}, s21
    s_mov_b32 s{SWS+2}, {WS_BYTES}
    s_mov_b32 s{SWS+3}, 0x00020000
    s_mov_b32 s{SG}, s16
    s_mov_b32 s{SG+1}, s17
    s_mov_b32 s{SG+2}, 896
    s_mov_b32 s{SG+3}, 0x00020000
    s_mov_b32 s61, {GW}
    s_sub_u32 s62, s3, 7
    s_cselect_b32 s3, s3, s62
    s_lshl_b32 s3, s3, 7
    v_lshlrev_b32 v1, 1, v2
    buffer_load_dword v{TAG}, off, {sr(SWS)}, s61 sc1
    buffer_load_ushort v244, v1, {sr(SG)}, s3 offen
    s_and_b32 s{sT}, s{sW}, 3
    s_lshr_b32 s{sE}, s{sW}, 2
    s_lshl_b32 s{sHB}, s{sP}, 1
    s_add_u32 s{sHB}, s{sHB}, s{sE}
    s_lshl_b32 s61, s{sHB}, 18
    s_add_u32 s{SKV}, s20, s61
    s_addc_u32 s{SKV+1}, s21, 0
    s_mov_b32 s{SKV+2}, 262144
    s_mov_b32 s{SKV+3}, 0x00020000
    s_lshl_b32 s{sKV}, s{sTB}, 2
    s_add_u32 s{sKV}, s{sKV}, s{sT}
    s_lshl_b32 s{sKV}, s{sKV}, 12
    s_lshl_b32 s{sFL}, s{sHB}, 2
    s_add_u32 s{sFL}, s{sFL}, s{sT}
    s_lshl_b32 s{sFL}, s{sFL}, {max(FS + 4, 7)}
    s_add_u32 s{sFL}, s{sFL}, {FK}
    v_lshlrev_b32 v{VL}, 4, v2
    v_mov_b32 v{IDX}, 0xdddddddd
    v_lshlrev_b32 v252, 6, v2
    v_mul_u32_u24 v249, 896, v11
    v_lshl_add_u32 v249, v248, 4, v249
    v_and_b32 v1, 31, v2                      ; n
    v_lshrrev_b32 v250, 5, v2                 ; hf
    v_bfe_u32 v12, v2, 1, 3
    v_xor_b32 v12, v250, v12
    v_and_b32 v13, 15, v2
    v_lshlrev_b32 v13, 7, v13
    v_lshl_add_u32 v12, v12, 4, v13
    v_bfe_u32 v13, v2, 4, 1
    v_lshl_add_u32 v12, v13, 12, v12
    s_lshl_b32 s61, s{sT}, 13
    v_add_u32 v11, s61, v12
    v_xor_b32 v12, 32, v11
    v_xor_b32 v14, 96, v11
    v_and_b32 v15, 3, v2
    v_lshlrev_b32 v15, 3, v15
    v_lshl_add_u32 v15, v13, 5, v15           ; 32*b4 + 8*c4
    v_xor_b32 v13, 64, v11
    s_mul_i32 s61, s{sE}, 56
    s_lshl_b32 s62, s{sE}, 3
    s_sub_u32 s62, 120, s62
    v_cmp_eq_u32 vcc, 56, v15
    v_add_u32 v15, s61, v15
    v_mov_b32 v247, s62
    v_cndmask_b32 v15, v15, v247, vcc
    v_bfe_u32 v247, v2, 3, 1
    v_lshlrev_b32 v247, 6, v247
    v_xor_b32 v15, v15, v247
    v_bfe_u32 v247, v2, 2, 2
    v_lshl_add_u32 v15, v247, 7, v15
    v_lshl_add_u32 v246, v250, 10, v15
    v_add_u32 v246, 65536, v246               ; Wq
    v_lshl_add_u32 v15, v250, 12, v15
    v_add_u32 v15, 2048, v15
    v_bfe_u32 v247, v2, 1, 1
    v_lshlrev_b32 v247, 6, v247
    v_xor_b32 v247, 112, v247
    v_lshl_add_u32 v247, v0, 7, v247
    v_cmp_eq_u32 vcc, 28, v1
    v_add_u32 v247, 65536, v247
    v_mov_b32 v245, 0
    v_cndmask_b32 v{AV}, 0, 1.0, vcc
    """)
    for i in range(1, 16):
        a(f"v_mov_b32 v{AV+i}, v{AV}")

    def reads(c, st):
        off = (c % 5 % 2) * 32768
        a(f"ds_read_b128 {vr(XF+16*c+4*st,4)}, v{11+st} offset:{off}")
        for m in range(2):
            b = WF + 8 * st + 4 * m
            a(f"ds_read_b64_tr_b16 {vr(b,2)}, v15 offset:{off+st*8192+m*1024}")
            a(f"ds_read_b64_tr_b16 {vr(b+2,2)}, v15 offset:{off+st*8192+m*1024+512}")

    def mm(c, st):
        x = XF + 16 * c + 4 * st
        a(mfma(AK, WF + 8 * st, x, None if (c == 0 and st == 0) else AK))
        a(mfma(AV, x, WF + 8 * st + 4, AV))

    q0 = [0]

    def issue(c):
        if c + DIST < 7:
            dma((c + DIST) % 5)
        else:
            n = QS[c + DIST - 7]
            if q0[0] == 0:
                a(f"s_sub_u32 s{sCOL}, s{sCOL}, 896")
            if n:
                dmaq(q0[0], q0[0] + n)

    for c in range(7):
        a(f"s_waitcnt vmcnt({after(f'd{c}')})")
        a("s_barrier")
        if c == 0:
            stamp(1)
        stamp(4 + c, "1")
        reads(c, 0)
        reads(c, 1)
        if STAG:
            a(f"s_cmp_eq_u32 s{sE}, 0")
            a(f"s_cbranch_scc0 L_sa{c}")
        issue(c)
        a(f"L_sa{c}:")
        a("s_waitcnt lgkmcnt(5)")
        mm(c, 0)
        reads(c, 2)
        a("s_waitcnt lgkmcnt(5)")
        mm(c, 1)
        reads(c, 3)
        if c == 5:
            a("ds_write2_b64 v247, v[244:245], v[244:245] offset0:0 offset1:1")
            a(f"v_add_u32 v{TAG}, {TAGC}, v{TAG}")
            a("s_waitcnt lgkmcnt(6)")
        else:
            a("s_waitcnt lgkmcnt(5)")
        mm(c, 2)
        if c in (1, 3, 4):
            d = 65536 if c != 4 else -131072
            for r in range(11, 16):
                a(f"v_add_u32 v{r}, {d & 0xffffffff}, v{r}")
        a("s_waitcnt lgkmcnt(0)")
        mm(c, 3)
        if STAG:
            a(f"s_cmp_eq_u32 s{sE}, 0")
            a(f"s_cbranch_scc1 L_sb{c}")
            issue(c)
            a(f"L_sb{c}:")
        if c + DIST < 7:
            vm.append((f"d{c+DIST}", 4))
        else:
            n = QS[c + DIST - 7]
            for i in range(n):
                vm.append((f"q{q0[0]+i}", 1))
            q0[0] += n
    stamp(2)
    a(f"""
    s_lshl_b32 s61, s{sTB}, {FS}
    s_nop 0
    s_add_u32 s61, s61, s{sFL}
    v_add_u32 v8, s{sTB}, v2
    v_and_b32 v8, 15, v8
    v_lshlrev_b32 v8, {FS}, v8
    s_nop 4
    """)
    for r in range(8):
        a(f"v_cvt_pk_bf16_f32 v{K+r}, v{AK+2*r}, v{AK+2*r+1}")
    a(f"buffer_store_dwordx4 {vr(K,4)}, v{VL}, {sr(SKV)}, s{sKV} offen {ST}")
    a(f"buffer_store_dwordx4 {vr(K+4,4)}, v{VL}, {sr(SKV)}, s{sKV} offen offset:1024 {ST}")
    for r in range(8):
        a(f"v_cvt_pk_bf16_f32 v{V+r}, v{AV+2*r}, v{AV+2*r+1}")
    a("s_nop 0")
    for x in (0, 1, 4, 5):
        a(f"v_permlane32_swap_b32 v{V+x}, v{V+x+2}")
    a(f"buffer_store_dwordx4 {vr(V,4)}, v{VL}, {sr(SKV)}, s{sKV} offen offset:2048 {ST}")
    a(f"buffer_store_dwordx4 {vr(V+4,4)}, v{VL}, {sr(SKV)}, s{sKV} offen offset:3072 {ST}")
    vm.append(("kv", 4))
    if q0[0] < 7:
        a(f"s_mov_b32 s3, s61")
        dmaq(q0[0], 7)
        a(f"s_mov_b32 s61, s3")
        for i in range(q0[0], 7):
            vm.append((f"q{i}", 1))
    D = 6
    QB = [int(x) for x in opt.get("qb", "3,7").split(",")]
    have = [0]
    FQ = int(opt.get("fq", 16))

    def flagk():
        a(f"""
        s_waitcnt vmcnt(0)
        s_mov_b64 exec, 1
        buffer_store_dword v{TAG}, off, {sr(SWS)}, s61 sc1
        s_mov_b64 exec, -1
        """)
        stamp(4)
        if opt.get("pf", "1") == "1":
            a(f"buffer_load_dword v251, v252, {sr(SKV)}, s{sKV} offen sc1")

    def rq(st):
        if st // 4 >= have[0]:
            have[0] = min(x for x in QB if x > st // 4)
            a(f"s_waitcnt vmcnt({after(f'q{have[0]-1}')})")
            a("s_barrier")
        b = WF + 4 * (st % 8)
        a(f"ds_read_b64_tr_b16 {vr(b,2)}, v246 offset:{st*2048}")
        a(f"ds_read_b64_tr_b16 {vr(b+2,2)}, v246 offset:{st*2048+512}")
    for st in range(D):
        rq(st)
    for st in range(28):
        if st + D < 28:
            rq(st + D)
        a(f"s_waitcnt lgkmcnt({2*min(D, 27-st)})")
        a(mfma(AQ, WF + 4 * (st % 8), XF + 4 * st, None if st == 0 else AQ))
        if 2 <= st < 18:
            for r in range(4):
                a(f"v_mov_b32 v{O+4*(st-2)+r}, 0")
        if st == FQ:
            flagk()
    stamp(3)
    if FQ > 27:
        flagk()
    a(f"""
    buffer_load_dword v{PD}, v8, {sr(SWS)}, s{sFL} offen sc1
    s_lshl_b32 s63, s{sE}, 2
    """)
    for j in range(3):
        a(f"""
        s_add_u32 s61, s{sT}, {j+1}
        s_and_b32 s61, s61, 3
        s_add_u32 s61, s61, s63
        s_lshl_b32 s62, s61, 11
        s_lshl_b32 s61, s61, 12
        s_add_u32 s62, s62, 131072
        s_add_u32 s61, s61, {65536 + j*32768}
        v_add_u32 v{(9, 10, 15)[j]}, s62, v{VL}
        v_add_u32 v{12+j}, s61, v{VL}
        """)
    a(f"""
    s_mov_b32 s62, {f32(math.log2(math.e) / math.sqrt(28.0))}
    s_lshl_b32 s61, s{sW}, 11
    s_add_u32 s61, s61, 131072
    v_add_u32 v11, s61, v{VL}
    v_mov_b32 v1, v{AQ+12}
    v_mov_b32 v{GS}, v{AQ+12}
    v_cmp_gt_u32 vcc, 32, v2
    """)
    for r in range(16):
        a(f"v_mul_f32 v{AQ+r}, s62, v{AQ+r}")
    a(f"v_permlane32_swap_b32 v1, v{GS}")
    for r in range(8):
        a(f"v_cvt_pk_bf16_f32 v{Q+24+r}, v{AQ+2*r}, v{AQ+2*r+1}")
    a(f"""
    v_cndmask_b32 v{Q+30}, 0, v{Q+30}, vcc
    ds_write_b128 v11, {vr(Q+24,4)}
    ds_write_b128 v11, {vr(Q+28,4)} offset:1024
    s_cmp_lt_u32 s{sP}, 8
    s_cselect_b32 s62, {f32(-math.log2(math.e))}, s62
    s_cbranch_scc1 L_gs
    s_mov_b32 s62, {f32(math.log2(math.e))}
    L_gs:
    v_mul_f32 v{GS}, s62, v{GS}
    v_exp_f32 v{GS}, v{GS}
    s_nop 0
    """)
    a(f"""
    v_add_f32 v{GS}, 1.0, v{GS}
    v_rcp_f32 v{GS}, v{GS}
    s_waitcnt lgkmcnt(0)
    s_barrier
    ds_read_b128 {vr(Q,4)}, v9
    ds_read_b128 {vr(Q+4,4)}, v9 offset:1024
    ds_read_b128 {vr(Q+8,4)}, v10
    ds_read_b128 {vr(Q+12,4)}, v10 offset:1024
    ds_read_b128 {vr(Q+16,4)}, v15
    ds_read_b128 {vr(Q+20,4)}, v15 offset:1024
    s_setprio 3
    s_cmp_lt_u32 s{sW}, 7
    s_cselect_b32 s{SG}, s8, s14
    s_cselect_b32 s{SG+1}, s9, s15
    s_mov_b32 s{SG+2}, {448*896}
    s_cselect_b32 s{sWO}, s{sW}, 0
    s_mul_i32 s{sWO}, s{sWO}, {64*896}
    s_lshr_b32 s71, s2, 3
    s_mul_i32 s61, s71, 37
    s_lshr_b32 s61, s61, 8
    s_mul_i32 s61, s61, 7
    s_sub_u32 s71, s71, s61
    s_lshl_b32 s71, s71, 7
    s_add_u32 s{sWO}, s{sWO}, s71
    s_lshl_b32 m0, s{sW}, 13
    s_mov_b32 s{sPASS}, 3
    s_mov_b32 s{sFB}, 0
    s_mov_b32 s{sLD}, 0
    s_mov_b32 s{sSPIN}, {SPIN}
    v_mov_b32 v9, v249
    v_add_u32 v10, {7168-1024}, v249
    """)
    def ex(j, r0):
        for r in range(r0, r0 + 4):
            a(f"v_exp_f32 v{S+16*j+r}, v{S+16*j+r}")

    def blk(u, j, mf=True, sm=True, ins=None, wait=None):
        ins = ins or {}
        nj = (j + 1) % 4
        ku = u if j < 3 else (u + 1) % 4
        pj = (j - 1) % 4
        vu = u if j > 0 else (u - 1) % 4
        if wait is not None:
            a(f"s_waitcnt vmcnt({wait})")
        if mf:
            a(mfma(S + 16 * nj, K + 8 * ku, Q + 8 * nj))
        a(ins.get(0, ""))
        ex(j, 0)
        if mf:
            a(mfma(S + 16 * nj, K + 8 * ku + 4, Q + 8 * nj + 4, S + 16 * nj))
        a(ins.get(1, ""))
        ex(j, 4)
        if sm:
            a(smf(O + 16 * pj, V + 8 * vu, S + 16 * pj))
        a(ins.get(2, ""))
        ex(j, 8)
        if sm:
            a(smf(O + 16 * pj, V + 8 * vu + 4, S + 16 * pj + 8))
        a(ins.get(3, ""))
        ex(j, 12)

    def ldK(u):
        return f"""
        s_add_u32 s{sKV}, s{sKV}, 16384
        s_and_b32 s{sKV}, s{sKV}, 0x3ffff
        buffer_load_dwordx4 {vr(K+8*u,4)}, v{VL}, {sr(SKV)}, s{sKV} offen sc1
        buffer_load_dwordx4 {vr(K+8*u+4,4)}, v{VL}, {sr(SKV)}, s{sKV} offen offset:1024 sc1
        """

    def ldV(u):
        return f"""
        buffer_load_dwordx4 {vr(V+8*u,4)}, v{VL}, {sr(SKV)}, s{sKV} offen offset:2048 sc1
        buffer_load_dwordx4 {vr(V+8*u+4,4)}, v{VL}, {sr(SKV)}, s{sKV} offen offset:3072 sc1
        """
    POLL = f"buffer_load_dword v{PD}, v8, {sr(SWS)}, s{sFL} offen sc1"

    SITES = opt.get("sites", "a,1,2").split(",")

    def site(n):
        if n not in SITES:
            return
        last = n == SITES[-1]
        if last:
            stamp(5)
        a(f"""
        s_cmp_lg_u32 s{sLD}, 0
        s_cbranch_scc1 L_sk{n}
        L_sp{n}:
        s_waitcnt vmcnt(0)
        v_cmp_ne_u32 vcc, v{TAG}, v{PD}
        s_and_b32 s61, vcc_lo, 0xe
        s_cbranch_scc0 L_ld{n}
        {POLL}
        """)
        if last:
            a(f"""
            s_sub_u32 s{sSPIN}, s{sSPIN}, 1
            s_cbranch_scc0 L_sp{n}
            """)
        else:
            a(f"s_branch L_sk{n}")
        a(f"L_ld{n}:")
        stamp(6)
        for u in (1, 2, 3):
            a(ldK(u))
            a(ldV(u))
        a(f"s_mov_b32 s{sLD}, 1")
        a(f"L_sk{n}:")

    site("a")
    a("s_waitcnt lgkmcnt(4)")
    a(mfma(S, K, Q))
    a(mfma(S, K + 4, Q + 4, S))
    a("s_waitcnt lgkmcnt(0)")
    a("s_nop 9")

    blk(0, 0, sm=False)
    site("0")
    blk(0, 1)
    site("1")
    blk(0, 2)
    site("2")
    a(POLL)
    blk(0, 3, mf=False)
    a(f"""
    s_and_b32 s61, vcc_lo, 0xfffe
    s_cbranch_scc0 L_go2
    s_mov_b32 s{sSPIN}, {SPIN}
    L_spin2:
    s_waitcnt vmcnt(0)
    v_cmp_ne_u32 vcc, v{TAG}, v{PD}
    s_and_b32 s61, vcc_lo, 0xfffe
    s_cbranch_scc0 L_go2
    {POLL}
    s_sub_u32 s{sSPIN}, s{sSPIN}, 1
    s_cbranch_scc0 L_spin2
    L_go2:
    s_waitcnt vmcnt(9)
    """)
    a(mfma(S, K + 8, Q))
    a(mfma(S, K + 12, Q + 4, S))
    a(ldK(0))
    stamp(7)
    a("s_nop 6")
    a(".p2align 6")
    a("L_loop:")
    WAIT = {1: 9, 2: 10, 3: 10, 0: 9}
    for u in (1, 2, 3, 0):
        for j in range(4):
            ins = {}
            if j == 1:
                ins[2] = ldV((u - 1) % 4)
                if u == 1:
                    ins[2] += f"buffer_load_dwordx4 v9, {sr(SG)}, s{sWO} offen lds\n"
                if u == 2:
                    ins[2] += f"""buffer_load_dwordx4 v10, {sr(SG)}, s{sWO} offen offset:1024 lds
                    s_add_u32 m0, m0, 2048
                    s_add_u32 s{sWO}, s{sWO}, {2*7168}
                    """
            if j == 3:
                ins[2] = ldK(u)
            blk(u, j, ins=ins, wait=WAIT[u] if j == 3 else None)
        if u == 2:
            a(f"""
            s_sub_u32 s{sPASS}, s{sPASS}, 1
            s_cbranch_scc1 L_last
            """)
    a(f"""
    s_setprio 2
    s_cmp_eq_u32 s{sPASS}, 2
    s_cbranch_scc1 L_loop
    s_setprio 1
    s_cmp_eq_u32 s{sPASS}, 1
    s_cbranch_scc1 L_loop
    s_setprio 0
    s_branch L_loop
    L_last:
    """)

    def wr(j):
        return "\n".join(f"ds_write_b128 v{12+j}, {vr(O+16*j+4*r,4)} offset:{r*1024}" for r in range(4)) + "\n"
    blk(3, 0)
    blk(3, 1)
    blk(3, 2, ins={2: wr(0)})
    blk(3, 3, mf=False, ins={3: wr(1)})
    a("s_nop 1")
    a(smf(O + 48, V + 24, S + 48))
    a(smf(O + 48, V + 28, S + 56))
    stamp(8)
    a(f"""
    s_lshl_b32 s61, s{sW}, 12
    s_add_u32 s61, s61, 65536
    v_add_u32 v11, s61, v{VL}
    v_add_u32 v15, 65536, v11
    s_nop 0
    """)
    a(wr(2))
    a("L_red:")
    a("s_waitcnt lgkmcnt(0)")
    a("s_barrier")
    OO = O + 48
    for j in range(3):
        for r in range(4):
            a(f"ds_read_b128 {vr(S+16*j+4*r,4)}, v{15 if j == 2 else 11} offset:{(j%2)*32768+r*1024}")
    a(f"""
    s_lshl_b32 s61, s{sTB}, 2
    s_add_u32 s61, s61, s{sT}
    s_lshl_b32 s61, s61, 5
    s_add_u32 s61, s61, s{sHB}
    s_lshl_b32 s62, s61, {FS2}
    s_add_u32 s62, s62, {FO}
    s_lshl_b32 s61, s61, 11
    s_add_u32 s61, s61, {OF}
    """)
    for j in range(3):
        a(f"s_waitcnt lgkmcnt({8-4*j})")
        for r in range(0, 16, 2):
            a(f"v_pk_add_f32 {vr(OO+r,2)}, {vr(OO+r,2)}, {vr(S+16*j+r,2)}")
    a(f"""
    v_mov_b32 v1, v{OO+12}
    v_mov_b32 v248, v{OO+12}
    v_mov_b32 v250, 0
    s_nop 0
    v_permlane32_swap_b32 v1, v248
    """)
    for r in range(16):
        a(f"v_fma_f32 v250, v{OO+r}, 0, v250")
    a(f"""
    v_cmp_gt_u32 vcc, 32, v2
    v_rcp_f32 v1, v248
    v_add_f32 v250, v250, v248
    v_mul_f32 v1, v1, v{GS}
    v_cndmask_b32 v248, 0, v1, vcc
    """)
    for r in range(12):
        a(f"v_mul_f32 v{OO+r}, v{OO+r}, v1")
    for r in range(12, 16):
        a(f"v_mul_f32 v{OO+r}, v{OO+r}, v248")
    for r in range(8):
        a(f"v_cvt_pk_bf16_f32 v{OO+r}, v{OO+2*r}, v{OO+2*r+1}")
    a(f"""
    buffer_store_dwordx4 {vr(OO,4)}, v{VL}, {sr(SWS)}, s61 offen sc1
    buffer_store_dwordx4 {vr(OO+4,4)}, v{VL}, {sr(SWS)}, s61 offen offset:1024 sc1
    v_mov_b32 v1, {f32(2.0**60)}
    v_cmp_nle_f32 vcc, {f32(2.0**-60)}, v250
    v_cmp_nge_f32 s[22:23], v1, v250
    s_or_b64 vcc, vcc, s[22:23]
    s_cselect_b32 s63, 1, 0
    v_mov_b32 v1, s63
    v_and_b32 v248, 7, v2
    v_lshlrev_b32 v248, 12, v248
    ds_write_b32 v15, v1
    v_add_u32 v248, 131072, v248
    s_waitcnt lgkmcnt(0)
    s_barrier
    ds_read_b32 v1, v248
    s_mov_b32 s{SWB}, s14
    s_mov_b32 s{SWB+1}, s15
    s_mov_b32 s{SWB+2}, {448*896}
    s_mov_b32 s{SWB+3}, 0x00020000
    s_mul_i32 s{sWO}, s{sW}, {56*896}
    s_add_u32 s{sWO}, s{sWO}, s71
    s_add_u32 s{sWO}, s{sWO}, {64*896}
    s_mul_i32 s63, s{sW}, 7168
    s_add_u32 m0, s63, 65536
    s_waitcnt lgkmcnt(0)
    v_cmp_lt_u32 vcc, s{sFB}, v1
    s_cbranch_vccnz L_fallback
    s_cmp_lt_u32 s2, 224
    s_cbranch_scc1 L_proj
    s_waitcnt vmcnt(0)
    s_mov_b64 exec, 1
    buffer_store_dword v{TAG}, off, {sr(SWS)}, s62 sc1
    s_mov_b64 exec, -1
    """)
    stamp(9)
    dump()
    a("s_endpgm")
    a("L_proj:")
    for i in range(7):
        a(f"buffer_load_dwordx4 v{9 + i % 2}, {sr(SWB)}, s{sWO} offen offset:{1024*(i%2)} lds")
        if i % 2:
            a("s_add_u32 m0, m0, 2048")
            a(f"s_add_u32 s{sWO}, s{sWO}, {2*7168}")
    WFR, OFR, ACC = 16, 144, 208
    a(f"""
    s_lshr_b32 s63, s2, 3
    s_mul_i32 s63, s63, 37
    s_lshr_b32 s63, s63, 8
    s_and_b32 s61, s2, 7
    s_lshl_b32 s61, s61, 2
    s_add_u32 s63, s63, s61
    s_lshl_b32 s63, s63, 1
    s_add_u32 s61, s63, s{sE}
    s_lshl_b32 s61, s61, 2
    s_add_u32 s61, s61, s{sT}                 ; qtile*4 + t
    s_lshl_b32 s{sFL}, s61, {FS2 + 3}
    s_add_u32 s{sFL}, s{sFL}, {FO}
    s_lshl_b32 s61, s61, 14
    s_add_u32 s61, s61, {OF}
    v_and_b32 v8, 7, v2
    v_lshlrev_b32 v8, {FS2}, v8
    s_waitcnt vmcnt(7)
    s_mov_b64 exec, 1
    buffer_store_dword v{TAG}, off, {sr(SWS)}, s62 sc1
    s_mov_b64 exec, -1
    {POLL}
    """)
    stamp(9)
    RS = 272
    a(f"""
    v_lshrrev_b32 v12, 5, v2                  ; hf
    v_bfe_u32 v13, v2, 2, 2                   ; r
    v_lshl_add_u32 v13, v12, 2, v13
    v_lshlrev_b32 v13, 7, v13
    v_and_b32 v14, 3, v2
    v_lshl_add_u32 v13, v14, 3, v13
    v_bfe_u32 v14, v2, 4, 1
    v_lshl_add_u32 v13, v14, 5, v13
    v_bfe_u32 v14, v2, 3, 1
    v_lshl_add_u32 v13, v14, 6, v13
    s_mul_i32 s62, s{sT}, {224*128}
    v_add_u32 v10, s62, v13
    v_xor_b32 v11, 64, v10
    s_mov_b32 s{SO}, s18
    s_mov_b32 s{SO+1}, s19
    s_mov_b32 s{SO+2}, {2048*896}
    s_mov_b32 s{SO+3}, 0x00020000
    v_and_b32 v13, 31, v2
    s_lshl_b32 s62, s{sT}, 6
    s_lshl_b32 s22, s{sE}, 5
    s_add_u32 s62, s62, s22
    v_add_u32 v13, s62, v13
    v_mul_u32_u24 v13, {RS}, v13
    v_lshl_add_u32 v12, v12, 4, v13
    v_lshrrev_b32 v14, 3, v0
    v_and_b32 v15, 7, v0
    v_mul_u32_u24 v13, {RS}, v14
    v_lshl_add_u32 v13, v15, 5, v13
    s_lshl_b32 s63, s63, 5
    v_add_u32 v14, s63, v14
    v_mul_u32_u24 v14, 896, v14
    v_lshl_add_u32 v14, v15, 4, v14
    s_waitcnt vmcnt(2)
    s_barrier
    """)
    for i in range(16):
        off = (28 * (i // 2) + 16 * (i % 2)) * 128
        b = WFR + i * 8
        if i >= 3 and i % 2:
            a("s_waitcnt lgkmcnt(4)")
        for ct in range(2):
            a(f"ds_read_b64_tr_b16 {vr(b+4*ct,2)}, v{10+ct} offset:{off}")
            a(f"ds_read_b64_tr_b16 {vr(b+4*ct+2,2)}, v{10+ct} offset:{off+1024}")
    a(f"""
    s_mov_b32 s{sSPIN}, {SPIN}
    L_spin3:
    s_waitcnt vmcnt(0)
    v_cmp_ne_u32 vcc, v{TAG}, v{PD}
    s_cbranch_vccz L_go3
    {POLL}
    s_sub_u32 s{sSPIN}, s{sSPIN}, 1
    s_cbranch_scc0 L_spin3
    L_go3:
    """)
    stamp(10)
    for i in range(16):
        if i % 4 == 0 and i:
            a("s_add_u32 s61, s61, 4096")
        a(f"buffer_load_dwordx4 {vr(OFR+4*i,4)}, v{VL}, {sr(SWS)}, s61 offen offset:{(i%4)*1024} sc1")
    a("s_waitcnt lgkmcnt(0)")
    a("s_barrier")
    for i in range(16):
        a(f"s_waitcnt vmcnt({15-i})")
        b = WFR + i * 8
        for ct in range(2):
            a(mfma(ACC + 16 * ct, b + 4 * ct, OFR + 4 * i, None if i == 0 else ACC + 16 * ct))
    a("s_nop 10")
    for ct in range(2):
        for q in range(4):
            a(f"ds_write_b128 v12, {vr(ACC+16*ct+4*q,4)} offset:{ct*128+q*32}")
    a("s_waitcnt lgkmcnt(0)")
    a("s_barrier")
    for q in range(4):
        for h in range(2):
            a(f"ds_read_b128 {vr(16+8*q+4*h,4)}, v13 offset:{q*64*RS+16*h}")
    a(f"""
    s_or_b32 s61, s2, s{sW}
    s_cbranch_scc1 L_noepoch
    s_mov_b32 s61, {GW}
    s_mov_b64 exec, 1
    buffer_store_dword v{TAG}, off, {sr(SWS)}, s61 sc1
    s_mov_b64 exec, -1
    L_noepoch:
    """)
    for q in range(1, 4):
        a(f"s_waitcnt lgkmcnt({6-2*q})")
        for r in range(0, 8, 2):
            a(f"v_pk_add_f32 {vr(16+r,2)}, {vr(16+r,2)}, {vr(16+8*q+r,2)}")
    for r in range(4):
        a(f"v_cvt_pk_bf16_f32 v{16+r}, v{16+2*r}, v{16+2*r+1}")
    a(f"buffer_store_dwordx4 v[16:19], v14, {sr(SO)}, s71 offen {opt.get('ost', '').replace('_', ' ')}")
    dump()
    a("L_end:")
    a("s_endpgm")

    M = 240
    a("L_fallback:")
    a("s_waitcnt vmcnt(0)")
    a(f"s_mov_b32 s{sFB}, 1")
    for j in range(4):
        a(f"v_mov_b32 v{M+j}, 0xff800000")
    a(f"s_mov_b32 s{sPASS}, 16")
    a("L_f1:")
    a(ldK(0))
    a("s_waitcnt vmcnt(0)")
    for j in range(4):
        a(mfma(S + 16 * j, K, Q + 8 * j))
        a(mfma(S + 16 * j, K + 4, Q + 8 * j + 4, S + 16 * j))
    a("s_nop 15")
    for j in range(4):
        for r in range(0, 16, 2):
            a(f"v_max3_f32 v{M+j}, v{M+j}, v{S+16*j+r}, v{S+16*j+r+1}")
    a(f"""
    s_sub_u32 s{sPASS}, s{sPASS}, 1
    s_cmp_lg_u32 s{sPASS}, 0
    s_cbranch_scc1 L_f1
    v_lshlrev_b32 v1, 2, v2
    s_lshl_b32 s63, s{sE}, 2
    """)
    for j in range(4):
        a(f"""
        s_add_u32 s61, s{sT}, {j+1}
        s_and_b32 s61, s61, 3
        s_add_u32 s61, s61, s63
        s_lshl_b32 s61, s61, 10
        s_add_u32 s61, s61, 65536
        v_add_u32 v{244+j}, s61, v1
        """)
    a(f"s_lshl_b32 s61, s{sT}, 8")
    for j in range(4):
        a(f"v_add_u32 v1, s61, v{244+j}")
        a(f"ds_write_b32 v1, v{M+j}")
    a("s_waitcnt lgkmcnt(0)")
    a("s_barrier")
    for j in range(4):
        for q in range(4):
            a(f"ds_read_b32 v{S+4*j+q}, v{244+j} offset:{256*q}")
        a("s_waitcnt lgkmcnt(0)")
    for j in range(4):
        a(f"""
        v_max3_f32 v{M+j}, v{S+4*j}, v{S+4*j+1}, v{S+4*j+2}
        v_max_f32 v{M+j}, v{M+j}, v{S+4*j+3}
        v_mov_b32 v1, v{M+j}
        s_nop 1
        v_permlane32_swap_b32 v1, v{M+j}
        s_nop 1
        v_max_f32 v{M+j}, v{M+j}, v1
        """)
    for i in range(64):
        a(f"v_mov_b32 v{O+i}, 0")
    a(f"s_mov_b32 s{sPASS}, 16")
    a("s_barrier")
    a("L_f2:")
    a(ldK(0))
    a(ldV(0))
    a("s_waitcnt vmcnt(0)")
    for j in range(4):
        a(mfma(S + 16 * j, K, Q + 8 * j))
        a(mfma(S + 16 * j, K + 4, Q + 8 * j + 4, S + 16 * j))
    a("s_nop 15")
    for j in range(4):
        for r in range(16):
            a(f"v_sub_f32 v{S+16*j+r}, v{S+16*j+r}, v{M+j}")
        for r in range(16):
            a(f"v_exp_f32 v{S+16*j+r}, v{S+16*j+r}")
    a("s_nop 3")
    for j in range(4):
        a(smf(O + 16 * j, V, S + 16 * j))
        a(smf(O + 16 * j, V + 4, S + 16 * j + 8))
    a(f"""
    s_nop 15
    s_sub_u32 s{sPASS}, s{sPASS}, 1
    s_cmp_lg_u32 s{sPASS}, 0
    s_cbranch_scc1 L_f2
    """)
    for j in range(3):
        a(wr(j))
    a("s_branch L_red")

    head = "; generated by gen2.py (hand-written generator)\n; @launch grid=(256,1,1) block=(512,1,1) lds=163840\n"
    extra = ""
    if opt.get("tiny"):
        pos, us = opt["tiny"].split(":")
        l1 = f"; @launch kernel={k} grid=(256,1,1) block=(512,1,1) lds=163840\n"
        l2 = "; @launch kernel=tiny_kernel grid=(1,1,1) block=(64,1,1) lds=0\n"
        head = "; diag\n" + (l2 + l1 if pos == "pre" else l1 + l2)
        a(f"""
        .globl tiny_kernel
        .p2align 8
        .type tiny_kernel,@function
        tiny_kernel:
        s_memrealtime s[4:5]
        L_tiny:
        s_memrealtime s[6:7]
        s_waitcnt lgkmcnt(0)
        s_sub_u32 s6, s6, s4
        s_cmp_lt_u32 s6, {int(float(us)*100)}
        s_cbranch_scc1 L_tiny
        s_endpgm
        """)
        extra = """.p2align 6
.amdhsa_kernel tiny_kernel
  .amdhsa_next_free_vgpr 8
  .amdhsa_next_free_sgpr 16
  .amdhsa_accum_offset 8
  .amdhsa_group_segment_fixed_size 0
  .amdhsa_kernarg_size 80
  .amdhsa_user_sgpr_count 2
  .amdhsa_user_sgpr_kernarg_segment_ptr 1
  .amdhsa_system_sgpr_workgroup_id_x 1
.end_amdhsa_kernel
"""
    return head + a.text() + f""".section .rodata,"a"
.p2align 6
.amdhsa_kernel {k}
  .amdhsa_next_free_vgpr 256
  .amdhsa_next_free_sgpr 102
  .amdhsa_accum_offset 256
  .amdhsa_group_segment_fixed_size 0
  .amdhsa_kernarg_size 80
  .amdhsa_user_sgpr_count 2
  .amdhsa_user_sgpr_kernarg_segment_ptr 1
  .amdhsa_system_sgpr_workgroup_id_x 1
.end_amdhsa_kernel
""" + extra


if __name__ == "__main__":
    opt = dict(x.split("=", 1) for x in sys.argv[2:])
    path = sys.argv[1] if len(sys.argv) > 1 else f"cdna_kernels/{NAME}.s"
    open(path, "w").write(gen(opt))
```
